```python
import torch

def _softmax(x, axis=-1):
    return torch.softmax(x, dim=axis)

def _gelu(x):
    return torch.nn.functional.gelu(x, approximate='tanh')

def _silu(x):
    return torch.nn.functional.silu(x)

def _sigmoid(x):
    return torch.sigmoid(x)

def _layernorm(x, axis=-1, eps=1e-05):
    m = x.mean(dim=axis, keepdim=True)
    v = x.var(dim=axis, keepdim=True, unbiased=False)
    return (x - m) / torch.sqrt(v + eps)

def _scatter_add(tgt, idx, src, axis=0):
    return tgt.clone().index_add_(axis, idx, src)

def _segment_sum(src, seg, n):
    out = torch.zeros((n,) + src.shape[1:], dtype=src.dtype)
    return out.index_add_(0, seg, src)

def _pad(x, pw):
    flat = tuple((v for pair in reversed(pw) for v in pair))
    return torch.nn.functional.pad(x, flat)
kernel_name = 'adaLN_cond__gqa_block_cached__dense_activation_relu__decode'

def setup_inputs():

    _w = lambda a: (lambda t: t.to(torch.bfloat16) if t.is_floating_point() else t)(torch.as_tensor(a))

    def _A_setup():
        B, Sq, D = (8, 1, 512)
        Hq, Hkv, Sk, Dh = (32, 8, 4096, 128)
        assert Hq % Hkv == 0, (Hq, Hkv)
        return {'x': _w((lambda *s: torch.randn(*s, dtype=torch.bfloat16) * 0.1)(B, Sq, D)), 'k_cache': _w((lambda *s: torch.randn(*s, dtype=torch.bfloat16) * 0.8)(B, Hkv, Sk, Dh)), 'v_cache': _w((lambda *s: torch.randn(*s, dtype=torch.bfloat16) * 0.8)(B, Hkv, Sk, Dh)), 'wq': _w((lambda *s: torch.randn(*s, dtype=torch.bfloat16) * 0.8)(D, Hq * Dh) * D ** (-0.5)), 'wo': _w((lambda *s: torch.randn(*s, dtype=torch.bfloat16) * 0.8)(Hq * Dh, D) * (Hq * Dh) ** (-0.5))}
    _A_in = _A_setup()

    def _B_setup():
        B, S, D, Dff = (8, 1, 512, 1792)
        return {'x': _w((lambda *s: torch.randn(*s, dtype=torch.bfloat16) * 0.1)(B, S, D)), 'w1': _w((lambda *s: torch.randn(*s, dtype=torch.bfloat16) * 0.1)(D, Dff)), 'w2': _w((lambda *s: torch.randn(*s, dtype=torch.bfloat16) * 0.1)(Dff, D))}
    _B_in = _B_setup()
    return {'A_x': _A_in['x'], 'A_k_cache': _A_in['k_cache'], 'A_v_cache': _A_in['v_cache'], 'A_wq': _A_in['wq'], 'A_wo': _A_in['wo'], 'B_x': _B_in['x'], 'B_w1': _B_in['w1'], 'B_w2': _B_in['w2'], 'c': _w((lambda *s: torch.randn(*s, dtype=torch.bfloat16) * 0.8)(8, 512) * 8.0), 'w_mod': _w((lambda *s: torch.randn(*s, dtype=torch.bfloat16) * 0.8)(512, 6 * 512) * 512 ** (-0.5) * 8.0)}

def reference(A_x, A_k_cache, A_v_cache, A_wq, A_wo, B_x, B_w1, B_w2, c, w_mod):

    def _A_ref(x, k_cache, v_cache, wq, wo):
        B, Sq, D = x.shape
        Hq, Dh = (32, 128)
        Hkv = k_cache.shape[1]
        rep = Hq // Hkv
        q = (lambda x, *d: x.permute(*d))((x @ wq).reshape(B, Sq, Hq, Dh), 0, 2, 1, 3)
        k = (lambda x, n, axis: torch.repeat_interleave(x, n, dim=axis))(k_cache, rep, axis=1)
        v = (lambda x, n, axis: torch.repeat_interleave(x, n, dim=axis))(v_cache, rep, axis=1)
        scores = torch.einsum('bhqd,bhkd->bhqk', q, k) * Dh ** (-0.5)
        p = _softmax(scores, axis=-1)
        o = torch.einsum('bhqk,bhkd->bhqd', p, v)
        return (lambda x, *d: x.permute(*d))(o, 0, 2, 1, 3).reshape(B, Sq, Hq * Dh) @ wo

    def _B_ref(x, w1, w2):
        h = torch.einsum('bsd,df->bsf', x, w1)
        zero = torch.zeros_like(h)
        h = torch.maximum(h, zero)
        return torch.einsum('bsf,fd->bsd', h, w2)
    x = A_x
    mod = (_silu(c) @ w_mod).reshape(c.shape[0], 6, 1, -1)
    sa, ca, ga, sb, cb, gb = (mod[:, 0].clone(), mod[:, 1].clone(), mod[:, 2].clone(), mod[:, 3].clone(), mod[:, 4].clone(), mod[:, 5].clone())
    h = _layernorm(x, axis=-1) * (1 + ca) + sa
    x = x + ga * _A_ref(h, A_k_cache, A_v_cache, A_wq, A_wo)
    h = _layernorm(x, axis=-1) * (1 + cb) + sb
    x = x + gb * _B_ref(h, B_w1, B_w2)
    return x
```

```python
import re

TRANS = ('v_exp_f32', 'v_log_f32', 'v_rcp_f32', 'v_rsq_f32', 'v_sqrt_f32', 'v_sin_f32', 'v_cos_f32', 'v_rcp_iflag_f32')
MFMA_PASSES = {'v_mfma_f32_16x16x32_bf16': 4, 'v_mfma_f32_16x16x16_bf16': 4, 'v_mfma_f32_32x32x16_bf16': 8,
               'v_mfma_f32_16x16x16_bf16_1k': 4, 'v_mfma_f32_4x4x4_16b_bf16': 2}

def regs_of(tok):
    tok = tok.strip()
    neg = tok.lstrip('-')
    m = re.fullmatch(r'abs\((.*)\)|\|(.*)\|', neg)
    if m: neg = m.group(1) or m.group(2)
    m = re.fullmatch(r'([vsa])(\d+)', neg)
    if m: return {(m.group(1), int(m.group(2)))}
    m = re.fullmatch(r'([vsa])\[(\d+):(\d+)\]', neg)
    if m: return {(m.group(1), i) for i in range(int(m.group(2)), int(m.group(3)) + 1)}
    if neg == 'vcc': return {('s', 'vcc_lo'), ('s', 'vcc_hi')}
    if neg in ('vcc_lo', 'vcc_hi'): return {('s', neg)}
    if neg == 'exec': return {('s', 'exec_lo'), ('s', 'exec_hi')}
    if neg in ('exec_lo', 'exec_hi'): return {('s', neg)}
    if neg == 'm0': return {('s', 'm0')}
    return set()

class Ins:
    __slots__ = ('text', 'op', 'kind', 'w', 'r', 'dpp', 'srcA', 'srcB', 'srcC', 'passes', 'states', 'lds', 'wide_store', 'store_data', 'target', 'sdwa', 'lanesel')
    def __init__(self, text):
        self.text = text
        t = text.split(';')[0].strip()
        self.op = ''; self.kind = 'other'; self.w = set(); self.r = set(); self.dpp = False
        self.srcA = self.srcB = self.srcC = set(); self.passes = 0; self.states = 1; self.lds = False
        self.wide_store = False; self.store_data = set(); self.target = None; self.sdwa = False; self.lanesel = set()
        if not t or t.startswith('.'): self.kind = 'meta'; self.states = 0; return
        if t.endswith(':'): self.kind = 'label'; self.states = 0; self.op = t[:-1]; return
        parts = t.split(None, 1)
        op = parts[0]; self.op = op
        rest = parts[1] if len(parts) > 1 else ''
        ops, depth, cur = [], 0, ''
        for ch in rest:
            if ch in '[(': depth += 1
            if ch in '])': depth -= 1
            if ch == ',' and depth == 0: ops.append(cur.strip()); cur = ''
            else: cur += ch
        if cur.strip(): ops.append(cur.strip())
        mods = ''
        if ops:
            sp = ops[-1].split(None, 1)
            ops[-1] = sp[0]
            mods = sp[1] if len(sp) > 1 else ''
        R = [regs_of(o) for o in ops]
        base = re.sub(r'_(e32|e64|dpp|sdwa)$', '', op)
        if op == 's_nop': self.kind = 'salu'; self.states = int(ops[0], 0) + 1; return
        if op.startswith('s_cbranch') or op == 's_branch':
            self.kind = 'branch'; self.target = ops[0]; return
        if op in ('s_setpc_b64', 's_swappc_b64', 's_call_b64', 's_endpgm'):
            self.kind = 'jump'; return
        if op.startswith('s_'):
            self.kind = 'salu'
            if op.startswith(('s_cmp', 's_waitcnt', 's_barrier', 's_sleep', 's_setprio', 's_bitcmp')):
                for x in R: self.r |= x
            else:
                if R: self.w |= R[0]
                for x in R[1:]: self.r |= x
                if 'saveexec' in op: self.w |= regs_of('exec')
            return
        if op.startswith('v_mfma'):
            self.kind = 'mfma'; self.passes = MFMA_PASSES[base]
            self.w = R[0]; self.srcA, self.srcB, self.srcC = R[1], R[2], R[3]
            self.r = R[1] | R[2] | R[3]; return
        if op.startswith('v_'):
            self.kind = 'valu'
            self.dpp = op.endswith('_dpp') or any(k in mods for k in ('quad_perm', 'row_shr', 'row_shl', 'row_ror', 'row_bcast', 'row_mirror', 'row_half_mirror', 'wave_', 'row_newbcast'))
            self.sdwa = op.endswith('_sdwa') or 'dst_sel' in mods or 'op_sel' in mods
            if base.startswith('v_cmp'):
                self.w = R[0]
                for x in R[1:]: self.r |= x
                if base.startswith('v_cmpx'): self.w |= regs_of('exec')
            elif base.startswith(('v_permlane16_swap', 'v_permlane32_swap', 'v_swap')):
                self.w = R[0] | R[1]; self.r = R[0] | R[1]
            elif re.match(r'v_(add|sub|subrev)_co_u32|v_div_scale', base):
                self.w = R[0] | R[1]
                for x in R[2:]: self.r |= x
            elif re.match(r'v_(addc|subb|subbrev)_co_u32', base):
                self.w = R[0] | R[1]
                for x in R[2:]: self.r |= x
            else:
                self.w = R[0]
                for x in R[1:]: self.r |= x
                if base in ('v_fmac_f32', 'v_pk_fmac_f16', 'v_dot2c_f32_bf16', 'v_writelane_b32'): self.r |= R[0]
                if self.dpp: self.r |= R[0]
                if base in ('v_cndmask_b32',) and len(ops) == 3: self.r |= regs_of('vcc')
                if base == 'v_div_fmas_f32': self.r |= regs_of('vcc')
                if base in ('v_readlane_b32', 'v_writelane_b32'): self.lanesel = R[2]
            return
        if op.startswith(('buffer_', 'global_')):
            self.kind = 'vmem'
            self.lds = bool(re.search(r'\blds\b', mods)) or '_lds_' in op
            if self.lds:
                for x in R: self.r |= x
                self.r |= regs_of('m0')
            elif '_load' in op:
                self.w = R[0]
                for x in R[1:]: self.r |= x
            elif '_store' in op or '_atomic' in op:
                for x in R: self.r |= x
                data = R[0] if op.startswith('buffer_') else (R[1] if '_store' in op or not re.search(r'\bsc0\b', mods) else R[2])
                self.store_data = data
                self.wide_store = bool(re.search(r'x3|x4', op))
                if '_atomic' in op and re.search(r'\bsc0\b', mods): self.w = R[0]
            else:
                for x in R: self.r |= x
            return
        if op.startswith('ds_'):
            self.kind = 'ds'
            if op.startswith(('ds_read', 'ds_bpermute', 'ds_permute', 'ds_swizzle')) or '_rtn' in op:
                self.w = R[0]
                for x in R[1:]: self.r |= x
            else:
                for x in R: self.r |= x
            return
        raise ValueError('unknown instruction: ' + text)

def isv(s): return {x for x in s if x[0] in 'va'}
def iss(s): return {x for x in s if x[0] == 's'}

def need(p, c):
    n = 0
    if p.kind == 'valu':
        wv, ws = isv(p.w), iss(p.w)
        if c.kind == 'mfma' and wv & c.r: n = max(n, 2)
        if c.kind == 'valu':
            if c.dpp and wv & c.r: n = max(n, 2)
            if c.op.startswith('v_permlane') and wv & c.r: n = max(n, 2)
            if c.op.startswith(('v_readlane', 'v_readfirstlane')) and wv & c.r: n = max(n, 1)
            if ws & c.r: n = max(n, 2)
            if ws & c.lanesel: n = max(n, 4)
            if c.op.startswith('v_div_fmas') and ws & regs_of('vcc'): n = max(n, 4)
            if p.sdwa and wv & (c.r | c.w): n = max(n, 1)
            if ws & regs_of('exec'):
                n = max(n, 5 if c.dpp else 4)
        if re.sub(r'_e(32|64)$', '', p.op) in TRANS and c.kind in ('valu', 'mfma', 'vmem', 'ds') and wv & c.r: n = max(n, 1)
        if c.kind == 'vmem' and ws & c.r: n = max(n, 5)
        if c.kind == 'mfma' and ws & regs_of('exec'): n = max(n, 4)
    if p.kind == 'mfma':
        P = p.passes
        big = {2: 5, 4: 8, 8: 12, 16: 20}[P]
        if c.kind == 'mfma':
            if p.w & c.srcC:
                if p.w == c.srcC and c.passes == P: n = max(n, 2 if P == 2 else 0)
                else: n = max(n, {2: 4, 4: 6, 8: 10, 16: 18}[P])
            if p.w & (c.srcA | c.srcB): n = max(n, big)
            if p.w & c.w and not (p.w == c.srcC and c.passes == P): n = max(n, big)
        elif c.kind in ('valu', 'vmem', 'ds'):
            if p.w & (c.r | c.w): n = max(n, big)
            if c.kind == 'valu' and p.srcC & c.w: n = max(n, {2: 1, 4: 3, 8: 7, 16: 15}[P])
    if p.kind == 'vmem' and p.wide_store:
        if p.store_data & c.w: n = max(n, 2 if c.kind == 'valu' else 1)
    if p.kind == 'ds' and re.search(r'b96|b128', p.op) and not p.w:
        if isv(p.r) & c.w and c.kind == 'valu': n = max(n, 1)
    if p.kind == 'salu' and ('s', 'm0') in p.w and c.kind == 'vmem' and c.lds: n = max(n, 1)
    return n

LOOK = 24
def insert_nops(lines):
    ins = [Ins(l) for l in lines]
    pad = [0] * len(ins)
    labels = {x.op: i for i, x in enumerate(ins) if x.kind == 'label'}
    preds = {}
    for i, x in enumerate(ins):
        if x.kind == 'branch' and x.target in labels: preds.setdefault(labels[x.target], []).append(i)
    def walk(i, dist, c, seen):
        worst = 0
        j = i - 1
        while j >= 0 and dist < LOOK:
            x = ins[j]
            if x.kind == 'label':
                for b in preds.get(j, []):
                    key = (b, dist)
                    if key not in seen:
                        seen.add(key)
                        worst = max(worst, walk(b, dist + 1, c, seen))
                j -= 1; continue
            if x.kind == 'jump' or (x.kind == 'branch' and x.op == 's_branch'):
                return worst
            if x.kind != 'meta':
                nn = need(x, c)
                if nn > dist: worst = max(worst, nn - dist)
                dist += x.states + pad[j]
            j -= 1
        return worst
    total = 0
    for i, c in enumerate(ins):
        if c.kind in ('meta', 'label', 'salu', 'branch', 'jump'): continue
        k = walk(i, 0, c, set())
        if k > 0: pad[i] = k; total += k
    out = []
    for i, x in enumerate(ins):
        k = pad[i]
        while k > 0:
            t = min(k, 16); out.append(f's_nop {t-1}'); k -= t
        out.append(x.text)
    return out, total

class Asm:
    def __init__(self): self.L = []; self._lab = 0
    def __call__(self, s):
        for line in s.strip('\n').split('\n'):
            line = line.strip()
            if line: self.L.append(line)
    def label(self, base='L'):
        self._lab += 1; return f'{base}_{self._lab}'
    def text(self):
        out, n = insert_nops(self.L)
        return '\n'.join(out) + '\n', n

def vr(b, n=1): return f'v{b}' if n == 1 else f'v[{b}:{b+n-1}]'
def sr(b, n=1): return f's{b}' if n == 1 else f's[{b}:{b+n-1}]'
```

```python
from common import *

WS_MOD   = 0x000000
WS_Q     = 0x010000
WS_OPART = 0x020000
WS_STATS = 0x0A0000
WS_WOP   = 0x0B0000
WS_X1    = 0x130000
WS_H1    = 0x134000
WS_END   = 0x13C000
WS_BYTES = 0x10000000

P_X, P_K, P_V, P_WQ, P_WO, P_BX, P_W1, P_W2, P_C, P_WMOD, P_OUT, P_DBG, P_WS = [16 + 2*i for i in range(13)]
S_WS, S_K, S_V, S_W, S_A, S_B = 44, 48, 52, 56, 60, 64
S_WAVE = 3
S_LOG2E, S_HI, S_SELLO, S_SELHI, S_SCALE = 68, 69, 70, 71, 72
S_T0, S_T1, S_T2, S_T3, S_T4, S_T5 = 74, 75, 76, 77, 78, 79
V_LANE = 1

def prologue(A, nwg):
    A(f's_cmp_ge_u32 s2, {nwg}'); A('s_cbranch_scc1 ' + A.end)
    A('s_load_dwordx16 s[16:31], s[0:1], 0')
    A('s_load_dwordx8 s[32:39], s[0:1], 64')
    A('s_load_dwordx2 s[40:41], s[0:1], 96')
    A('v_lshrrev_b32 v2, 6, v0'); A(f'v_and_b32 v{V_LANE}, 63, v0')
    A(f'v_readfirstlane_b32 s{S_WAVE}, v2')
    A(f's_mov_b32 s{S_LOG2E}, 0x3fb8aa3b'); A(f's_mov_b32 s{S_HI}, 0xffff0000')
    A(f's_mov_b32 s{S_SELLO}, 0x05040100'); A(f's_mov_b32 s{S_SELHI}, 0x07060302')
    A(f's_mov_b32 s{S_SCALE}, 0x3db504f3')
    A('s_waitcnt lgkmcnt(0)')
    srd(A, S_WS, P_WS, WS_BYTES)

def unpack2(A, lo, hi, src):
    A(f'v_and_b32 v{hi}, s{S_HI}, v{src}') if hi != src else None
    A(f'v_lshlrev_b32 v{lo}, 16, v{src}')
    if hi == src: raise ValueError
def unpack8(A, dst, src):
    for i in range(4):
        A(f'v_lshlrev_b32 v{dst+2*i}, 16, v{src+i}'); A(f'v_and_b32 v{dst+2*i+1}, s{S_HI}, v{src+i}')
def round8(A, r, tmp):
    for i in range(4): A(f'v_cvt_pk_bf16_f32 v{tmp+i}, v{r+2*i}, v{r+2*i+1}')
    unpack8(A, r, tmp)
def round1(A, r):
    A(f'v_cvt_pk_bf16_f32 v{r}, v{r}, v{r}'); A(f'v_and_b32 v{r}, s{S_HI}, v{r}')

def rows_reduce(A, op, r, t):
    A(f'v_mov_b32 v{t}, v{r}'); A(f'v_permlane16_swap_b32 v{r}, v{t}'); A(f'{op} v{r}, v{r}, v{t}')
    A(f'v_mov_b32 v{t}, v{r}'); A(f'v_permlane32_swap_b32 v{r}, v{t}'); A(f'{op} v{r}, v{r}, v{t}')
def row_reduce(A, op, r, steps=(8, 4, 2, 1)):
    for n in steps: A(f'{op}_dpp v{r}, v{r}, v{r} row_ror:{n} row_mask:0xf bank_mask:0xf')
def wave_sum(A, r, t):
    row_reduce(A, 'v_add_f32', r); rows_reduce(A, 'v_add_f32', r, t)

def wtile_dma(A, srdreg, pitch, row0_s, colbyte_s, nins, lds_base_s, vtmp, pol='nt', rowmap=None):
    A(f'v_lshrrev_b32 v{vtmp}, 3, v{V_LANE}')
    A(f'v_mul_u32_u24 v{vtmp}, {pitch}, v{vtmp}')
    A(f'v_and_b32 v{vtmp+1}, 7, v{V_LANE}')
    A(f'v_lshl_add_u32 v{vtmp}, v{vtmp+1}, 4, v{vtmp}')
    A(f's_mul_i32 s{S_T0}, s{row0_s}, {pitch}'); A(f's_add_u32 s{S_T0}, s{S_T0}, s{colbyte_s}')
    for i in range(nins):
        A(f's_add_u32 m0, s{lds_base_s}, {i*1024}')
        A(f's_add_u32 s{S_T1}, s{S_T0}, {i*8*pitch}')
        A(f'buffer_load_dwordx4 v{vtmp}, s[{srdreg}:{srdreg+3}], s{S_T1} offen {pol} lds')

def tr_addr(A, v, t, pitch, base_s):
    A(f'v_lshrrev_b32 v{v}, 4, v{V_LANE}'); A(f'v_lshlrev_b32 v{v}, 3, v{v}')
    A(f'v_bfe_u32 v{t}, v{V_LANE}, 2, 2'); A(f'v_add_u32 v{v}, v{v}, v{t}')
    A(f'v_mul_u32_u24 v{v}, {pitch}, v{v}')
    A(f'v_and_b32 v{t}, 3, v{V_LANE}'); A(f'v_lshl_add_u32 v{v}, v{t}, 3, v{v}')
    A(f'v_add_u32 v{v}, s{base_s}, v{v}')

L_W   = 0
L_ACT = 0x10000
L_RED = 0x12400
ACT_PITCH, RED_B, RED_W = 1056, 272, 2176
LDS64_BYTES = L_RED + 8 * RED_W

def stage64_weights(A, srdreg, pitch, col0_s, vt, pol='nt'):
    A(f's_lshl_b32 s{S_T2}, s{S_WAVE}, 6'); A(f's_lshl_b32 s{S_T3}, s{col0_s}, 1')
    A(f's_lshl_b32 s{S_T4}, s{S_WAVE}, 13'); A(f's_add_u32 s{S_T4}, s{S_T4}, {L_W}')
    wtile_dma(A, srdreg, pitch, S_T2, S_T3, 8, S_T4, vt, pol)

def stage64_wread(A, wreg, vt):
    A(f's_lshl_b32 s{S_T4}, s{S_WAVE}, 13'); A(f's_add_u32 s{S_T4}, s{S_T4}, {L_W}')
    tr_addr(A, vt, vt + 1, 128, S_T4)
    for u in range(2):
        for c in range(4):
            for h in range(2):
                r = wreg + 16*u + 4*c + 2*h
                A(f'ds_read_b64_tr_b16 v[{r}:{r+1}], v{vt} offset:{(32*u + 4*h)*128 + 32*c}')

def stage64_compute(A, act, wreg, vt):
    a0, b, acc = vt, vt + 4, vt + 12
    A(f's_mul_i32 s{S_T0}, s{S_WAVE}, {ACT_PITCH}'); A(f's_add_u32 s{S_T0}, s{S_T0}, {L_ACT}')
    A(f'v_lshl_add_u32 v{a0}, v{V_LANE}, 4, s{S_T0}')
    A(f'ds_write_b128 v{a0}, v[{act}:{act+3}]')
    A(f'v_and_b32 v{a0+1}, 7, v{V_LANE}'); A(f'v_mul_u32_u24 v{a0+1}, {ACT_PITCH}, v{a0+1}')
    A(f'v_lshrrev_b32 v{a0+2}, 4, v{V_LANE}'); A(f'v_lshl_add_u32 v{a0+1}, v{a0+2}, 4, v{a0+1}')
    A(f's_lshl_b32 s{S_T0}, s{S_WAVE}, 7'); A(f's_add_u32 s{S_T0}, s{S_T0}, {L_ACT}')
    A(f'v_add_u32 v{a0+1}, s{S_T0}, v{a0+1}')
    A(f'v_and_b32 v{a0+3}, 15, v{V_LANE}'); A(f'v_mul_u32_u24 v{a0+3}, {RED_B}, v{a0+3}')
    A(f'v_lshl_add_u32 v{a0+3}, v{a0+2}, 4, v{a0+3}')
    A(f's_mul_i32 s{S_T0}, s{S_WAVE}, {RED_W}'); A(f's_add_u32 s{S_T0}, s{S_T0}, {L_RED}')
    A(f'v_add_u32 v{a0+3}, s{S_T0}, v{a0+3}')
    A('s_waitcnt lgkmcnt(0)'); A('s_barrier')
    A(f'ds_read_b128 v[{b}:{b+3}], v{a0+1}'); A(f'ds_read_b128 v[{b+4}:{b+7}], v{a0+1} offset:64')
    A('s_waitcnt lgkmcnt(1)')
    for c in range(4): A(f'v_mfma_f32_16x16x32_bf16 v[{acc+4*c}:{acc+4*c+3}], v[{wreg+4*c}:{wreg+4*c+3}], v[{b}:{b+3}], 0')
    A('s_waitcnt lgkmcnt(0)')
    for c in range(4): A(f'v_mfma_f32_16x16x32_bf16 v[{acc+4*c}:{acc+4*c+3}], v[{wreg+16+4*c}:{wreg+16+4*c+3}], v[{b+4}:{b+7}], v[{acc+4*c}:{acc+4*c+3}]')
    A('s_mov_b32 exec_lo, 0x00ff00ff'); A('s_mov_b32 exec_hi, 0x00ff00ff')
    for c in range(4): A(f'ds_write_b128 v{a0+3}, v[{acc+4*c}:{acc+4*c+3}] offset:{64*c}')
    A('s_mov_b64 exec, -1')
    A(f's_mul_i32 s{S_T0}, s{S_WAVE}, {RED_B}'); A(f's_add_u32 s{S_T0}, s{S_T0}, {L_RED}')
    A(f'v_lshl_add_u32 v{a0}, v{V_LANE}, 3, s{S_T0}')
    A('s_waitcnt lgkmcnt(0)'); A('s_barrier')
    A('s_mov_b32 exec_hi, 0')
    for w in range(8): A(f'ds_read_b64 v[{acc+2*w}:{acc+2*w+1}], v{a0} offset:{w*RED_W}')
    A('s_waitcnt lgkmcnt(0)')
    for k in range(2):
        A(f'v_add_f32 v{acc+k}, v{acc+k}, v{acc+2+k}'); A(f'v_add_f32 v{acc+4+k}, v{acc+4+k}, v{acc+6+k}')
        A(f'v_add_f32 v{acc+8+k}, v{acc+8+k}, v{acc+10+k}'); A(f'v_add_f32 v{acc+12+k}, v{acc+12+k}, v{acc+14+k}')
    for k in range(2):
        A(f'v_add_f32 v{acc+k}, v{acc+k}, v{acc+4+k}'); A(f'v_add_f32 v{acc+8+k}, v{acc+8+k}, v{acc+12+k}')
    for k in range(2): A(f'v_add_f32 v{vt+8+k}, v{acc+k}, v{acc+8+k}')

def silu8(A, c, out, t):
    unpack8(A, t, c)
    for i in range(8): A(f'v_mul_f32 v{t+8+i}, s{S_LOG2E}, v{t+i}')
    for i in range(8): A(f'v_exp_f32 v{t+8+i}, -v{t+8+i}')
    for i in range(8): A(f'v_add_f32 v{t+8+i}, 1.0, v{t+8+i}')
    for i in range(8): A(f'v_rcp_f32 v{t+8+i}, v{t+8+i}')
    for i in range(8): A(f'v_mul_f32 v{t+i}, v{t+i}, v{t+8+i}')
    for i in range(4): A(f'v_cvt_pk_bf16_f32 v{out+i}, v{t+2*i}, v{t+2*i+1}')

def lnmod_pre(A, sc, sh, t):
    unpack8(A, t, sc)
    for i in range(8): A(f'v_add_f32 v{t+i}, 1.0, v{t+i}')
    round8(A, t, sc)
    unpack8(A, t + 8, sh)

def lnmod(A, x, pre, out, t):
    xs, s, u, d = t, t + 8, t + 9, t + 10
    unpack8(A, xs, x)
    A(f'v_add_f32 v{s}, v{xs}, v{xs+1}'); A(f'v_add_f32 v{u}, v{xs+2}, v{xs+3}')
    A(f'v_add_f32 v{d}, v{xs+4}, v{xs+5}'); A(f'v_add_f32 v{d+1}, v{xs+6}, v{xs+7}')
    A(f'v_add_f32 v{s}, v{s}, v{u}'); A(f'v_add_f32 v{d}, v{d}, v{d+1}'); A(f'v_add_f32 v{s}, v{s}, v{d}')
    wave_sum(A, s, u)
    A(f'v_mul_f32 v{s}, 0x3b000000, v{s}')
    for i in range(8): A(f'v_sub_f32 v{d+i}, v{xs+i}, v{s}')
    A(f'v_mul_f32 v{u}, v{d}, v{d}'); A(f'v_mul_f32 v{d+8}, v{d+1}, v{d+1}')
    for i in range(2, 8, 2): A(f'v_fmac_f32 v{u}, v{d+i}, v{d+i}'); A(f'v_fmac_f32 v{d+8}, v{d+i+1}, v{d+i+1}')
    A(f'v_add_f32 v{u}, v{u}, v{d+8}')
    round1(A, s)
    for i in range(8): A(f'v_sub_f32 v{xs+i}, v{xs+i}, v{s}')
    wave_sum(A, u, d)
    round8(A, xs, d + 2)
    A(f'v_mul_f32 v{u}, 0x3b000000, v{u}'); round1(A, u)
    A(f'v_add_f32 v{u}, 0x3727c5ac, v{u}'); round1(A, u)
    A(f'v_sqrt_f32 v{u}, v{u}'); round1(A, u)
    A(f'v_rcp_f32 v{u}, v{u}')
    for i in range(8): A(f'v_mul_f32 v{xs+i}, v{xs+i}, v{u}')
    round8(A, xs, d)
    for i in range(8): A(f'v_mul_f32 v{xs+i}, v{xs+i}, v{pre+i}')
    round8(A, xs, d)
    for i in range(8): A(f'v_add_f32 v{xs+i}, v{xs+i}, v{pre+8+i}')
    for i in range(4): A(f'v_cvt_pk_bf16_f32 v{out+i}, v{xs+2*i}, v{xs+2*i+1}')

class AttnRegs:
    Q = 4
    M = 8; L = 9
    KOFF = 10; VOFF = 11
    S = 12
    B = 20
    ACC = 24
    VT = 32
    O = 44
    D = 76
    BUF = 108

def attn_scores(A, R, kbuf):
    for t in range(8):
        A(f'v_mfma_f32_16x16x32_bf16 v[{R.D+4*t}:{R.D+4*t+3}], v[{kbuf+4*t}:{kbuf+4*t+3}], v[{R.Q}:{R.Q+3}], 0')
    for grp in range(2):
        for t in range(4):
            for p in range(4):
                n = 4 * ((t - p) % 4)
                ctl = f'row_ror:{n}' if n else 'quad_perm:[0,1,2,3]'
                A(f'v_mov_b32_dpp v{R.ACC+4*grp+p}, v{R.D+4*(4*grp+t)+p} {ctl} row_mask:0xf bank_mask:{1<<t:#x}')
    for grp in range(2):
        a = R.ACC + 4*grp
        A(f'v_add_f32 v{a}, v{a}, v{a+1}'); A(f'v_add_f32 v{a+2}, v{a+2}, v{a+3}')
    for grp in range(2):
        a = R.ACC + 4*grp
        A(f'v_add_f32 v{R.S+grp}, v{a}, v{a+2}')
    s, t = R.S, R.S + 2
    A(f'v_cvt_pk_bf16_f32 v{t}, v{s}, v{s+1}')
    A(f'v_lshlrev_b32 v{s}, 16, v{t}'); A(f'v_and_b32 v{s+1}, s{S_HI}, v{t}')
    A(f'v_mul_f32 v{s}, s{S_SCALE}, v{s}'); A(f'v_mul_f32 v{s+1}, s{S_SCALE}, v{s+1}')
    A(f'v_cvt_pk_bf16_f32 v{t}, v{s}, v{s+1}')
    A(f'v_lshlrev_b32 v{s}, 16, v{t}'); A(f'v_and_b32 v{s+1}, s{S_HI}, v{t}')

def attn_softmax(A, R):
    s, t = R.S, R.S + 2
    skip = A.label('L_nomax')
    A(f'v_max_f32 v{t}, v{s}, v{s+1}')
    A(f'v_cmp_gt_f32 vcc, v{t}, v{R.M}')
    A(f's_cbranch_vccz {skip}')
    row_reduce(A, 'v_max_f32', t, (4, 8)); rows_reduce(A, 'v_max_f32', t, t + 1)
    A(f'v_max_f32 v{t}, v{t}, v{R.M}')
    A(f'v_sub_f32 v{t+1}, v{R.M}, v{t}'); A(f'v_mov_b32 v{R.M}, v{t}')
    A(f'v_mul_f32 v{t+1}, s{S_LOG2E}, v{t+1}'); A(f'v_exp_f32 v{t+1}, v{t+1}')
    A(f'v_mul_f32 v{R.L}, v{R.L}, v{t+1}')
    for i in range(32): A(f'v_mul_f32 v{R.O+i}, v{R.O+i}, v{t+1}')
    A(f'{skip}:')
    A(f'v_sub_f32 v{s}, v{s}, v{R.M}'); A(f'v_sub_f32 v{s+1}, v{s+1}, v{R.M}')
    A(f'v_mul_f32 v{s}, s{S_LOG2E}, v{s}'); A(f'v_mul_f32 v{s+1}, s{S_LOG2E}, v{s+1}')
    A(f'v_exp_f32 v{s}, v{s}'); A(f'v_exp_f32 v{s+1}, v{s+1}')
    A(f'v_cvt_pk_bf16_f32 v{R.B}, v{s}, v{s+1}')
    A(f'v_add_f32 v{R.L}, v{R.L}, v{s}'); A(f'v_add_f32 v{R.L}, v{R.L}, v{s+1}')
    for k in range(1, 4): A(f'v_mov_b32_dpp v{R.B+k}, v{R.B} row_ror:{16-4*k} row_mask:0xf bank_mask:0xf')

def attn_pv(A, R, vbuf):
    for d in range(8):
        vt = R.VT + 4 * (d % 3)
        sel = S_SELHI if d & 1 else S_SELLO
        for t in range(4):
            A(f'v_perm_b32 v{vt+t}, v{vbuf+4*(t+4)+(d>>1)}, v{vbuf+4*t+(d>>1)}, s{sel}')
        A(f'v_mfma_f32_16x16x32_bf16 v[{R.O+4*d}:{R.O+4*d+3}], v[{vt}:{vt+3}], v[{R.B}:{R.B+3}], v[{R.O+4*d}:{R.O+4*d+3}]')

def attn_offsets(A, R):
    t = R.S
    A(f'v_bfe_u32 v{t}, v{V_LANE}, 2, 2'); A(f'v_lshlrev_b32 v{t}, 8, v{t}')
    A(f'v_lshrrev_b32 v{t+1}, 4, v{V_LANE}'); A(f'v_lshl_add_u32 v{t}, v{t+1}, 6, v{t}')
    A(f'v_and_b32 v{t+1}, 3, v{V_LANE}'); A(f'v_lshl_add_u32 v{R.KOFF}, v{t+1}, 4, v{t}')
    A(f'v_lshlrev_b32 v{R.VOFF}, 4, v{V_LANE}')
    A(f'v_mov_b32 v{R.M}, 0xff7fffff'); A(f'v_mov_b32 v{R.L}, 0')
    for i in range(32): A(f'v_mov_b32 v{R.O+i}, 0')

def q_addr(A, v, t, pair_s):
    A(f'v_and_b32 v{v}, 3, v{V_LANE}'); A(f'v_lshlrev_b32 v{v}, 8, v{v}')
    A(f'v_lshrrev_b32 v{t}, 2, v{V_LANE}'); A(f'v_lshl_add_u32 v{v}, v{t}, 4, v{v}')
    A(f's_lshl_b32 s{S_T0}, s{pair_s}, 10'); A(f's_add_u32 s{S_T0}, s{S_T0}, {WS_Q}')
    A(f'v_add_u32 v{v}, s{S_T0}, v{v}')

def attn_combine(A, R, lbase, wgslot_s, pol):
    OW = 2048 + 64
    LS = lbase + 8 * OW
    t = R.S
    row_reduce(A, 'v_add_f32', R.L, (4, 8)); rows_reduce(A, 'v_add_f32', R.L, t)
    A(f'v_and_b32 v{t}, 3, v{V_LANE}'); A(f'v_mul_u32_u24 v{t+1}, 528, v{t}')
    A(f'v_lshrrev_b32 v{t+2}, 4, v{V_LANE}'); A(f'v_lshl_add_u32 v{t+1}, v{t+2}, 4, v{t+1}')
    A(f's_mul_i32 s{S_T0}, s{S_WAVE}, {OW}'); A(f's_add_u32 s{S_T0}, s{S_T0}, {lbase}')
    A(f'v_add_u32 v{t+1}, s{S_T0}, v{t+1}')
    A(f's_lshl_b32 s{S_T0}, s{S_WAVE}, 2'); A(f's_add_u32 s{S_T0}, s{S_T0}, {LS}')
    A(f'v_lshl_add_u32 v{t+2}, v{t}, 5, s{S_T0}')
    A('s_mov_b32 exec_lo, 0x000f000f'); A('s_mov_b32 exec_hi, 0x000f000f')
    for d in range(8): A(f'ds_write_b128 v{t+1}, v[{R.O+4*d}:{R.O+4*d+3}] offset:{64*d}')
    A('s_mov_b64 exec, 15')
    A(f'ds_write_b32 v{t+2}, v{R.M}'); A(f'ds_write_b32 v{t+2}, v{R.L} offset:128')
    A('s_mov_b64 exec, -1')
    A(f's_lshr_b32 s{S_T1}, s{S_WAVE}, 1'); A(f's_and_b32 s{S_T2}, s{S_WAVE}, 1')
    A(f's_mul_i32 s{S_T0}, s{S_T1}, 528'); A(f's_lshl_b32 s{S_T3}, s{S_T2}, 8'); A(f's_add_u32 s{S_T0}, s{S_T0}, s{S_T3}')
    A(f's_add_u32 s{S_T0}, s{S_T0}, {lbase}')
    A(f'v_lshl_add_u32 v{t}, v{V_LANE}, 2, s{S_T0}')
    A(f's_lshl_b32 s{S_T0}, s{S_T1}, 5'); A(f's_add_u32 s{S_T0}, s{S_T0}, {LS}'); A(f'v_mov_b32 v{t+1}, s{S_T0}')
    A(f's_lshl_b32 s{S_T0}, s{wgslot_s}, 11'); A(f's_lshl_b32 s{S_T3}, s{S_WAVE}, 8'); A(f's_add_u32 s{S_T0}, s{S_T0}, s{S_T3}')
    A(f's_add_u32 s{S_T0}, s{S_T0}, {WS_OPART}')
    A(f'v_lshl_add_u32 v{t+2}, v{V_LANE}, 2, s{S_T0}')
    A(f's_lshl_b32 s{S_T0}, s{wgslot_s}, 5'); A(f's_lshl_b32 s{S_T3}, s{S_T1}, 3'); A(f's_add_u32 s{S_T0}, s{S_T0}, s{S_T3}')
    A(f's_add_u32 s{S_T0}, s{S_T0}, {WS_STATS}'); A(f'v_mov_b32 v{t+3}, s{S_T0}')
    A('s_waitcnt lgkmcnt(0)'); A('s_barrier')
    m, l, o = R.D, R.D + 8, R.D + 16
    A(f'ds_read_b128 v[{m}:{m+3}], v{t+1}'); A(f'ds_read_b128 v[{m+4}:{m+7}], v{t+1} offset:16')
    for w in range(8): A(f'ds_read_b32 v{o+w}, v{t} offset:{w*OW}')
    A(f'ds_read_b128 v[{l}:{l+3}], v{t+1} offset:128'); A(f'ds_read_b128 v[{l+4}:{l+7}], v{t+1} offset:144')
    A('s_waitcnt lgkmcnt(10)')
    M = R.ACC
    A(f'v_max3_f32 v{M}, v{m}, v{m+1}, v{m+2}'); A(f'v_max3_f32 v{M+1}, v{m+3}, v{m+4}, v{m+5}')
    A(f'v_max3_f32 v{M}, v{M}, v{m+6}, v{m+7}'); A(f'v_max_f32 v{M}, v{M}, v{M+1}')
    for w in range(8): A(f'v_sub_f32 v{m+w}, v{m+w}, v{M}')
    for w in range(8): A(f'v_mul_f32 v{m+w}, s{S_LOG2E}, v{m+w}')
    for w in range(8): A(f'v_exp_f32 v{m+w}, v{m+w}')
    A('s_waitcnt lgkmcnt(2)')
    A(f'v_mul_f32 v{M+2}, v{o}, v{m}'); A(f'v_mul_f32 v{M+3}, v{o+1}, v{m+1}')
    for w in range(2, 8, 2): A(f'v_fmac_f32 v{M+2}, v{o+w}, v{m+w}'); A(f'v_fmac_f32 v{M+3}, v{o+w+1}, v{m+w+1}')
    A(f'v_add_f32 v{M+2}, v{M+2}, v{M+3}')
    A(f'v_min_u32 v{M+2}, -2, v{M+2}')
    A(f'buffer_store_dword v{M+2}, v{t+2}, s[{S_WS}:{S_WS+3}], 0 offen {pol}')
    A('s_waitcnt lgkmcnt(0)')
    A(f'v_mul_f32 v{M+1}, v{l}, v{m}')
    for w in range(1, 8): A(f'v_fmac_f32 v{M+1}, v{l+w}, v{m+w}')
    A(f'v_min_u32 v{M}, -2, v{M}'); A(f'v_min_u32 v{M+1}, -2, v{M+1}')
    done = A.label('L_nostat')
    A(f's_cmp_lg_u32 s{S_T2}, 0'); A(f's_cbranch_scc1 {done}')
    A('s_mov_b64 exec, 1')
    A(f'buffer_store_dwordx2 v[{M}:{M+1}], v{t+3}, s[{S_WS}:{S_WS+3}], 0 offen {pol}')
    A('s_mov_b64 exec, -1')
    A(f'{done}:')
ATTN_LDS = 8 * (2048 + 64) + 256
```

```python
from asmdsl import *
KN = 'adaLN_cond__gqa_block_cached__dense_activation_relu__decode'
def kernel_open(A, name):
    A(f'.globl {name}'); A('.p2align 8'); A(f'.type {name},@function'); A(f'{name}:')
def descriptor(name, vgpr=256, sgpr=102, accum=None):
    accum = accum or ((vgpr + 3) // 4 * 4)
    return f'''.p2align 6
.amdhsa_kernel {name}
  .amdhsa_next_free_vgpr {vgpr}
  .amdhsa_next_free_sgpr {sgpr}
  .amdhsa_accum_offset {accum}
  .amdhsa_group_segment_fixed_size 0
  .amdhsa_kernarg_size 104
  .amdhsa_user_sgpr_count 2
  .amdhsa_user_sgpr_kernarg_segment_ptr 1
  .amdhsa_system_sgpr_workgroup_id_x 1
  .amdhsa_float_denorm_mode_32 3
.end_amdhsa_kernel
'''
def srd(A, dst, ptr, nbytes):
    A(f's_mov_b32 s{dst}, s{ptr}'); A(f's_and_b32 s{dst+1}, s{ptr+1}, 0xffff')
    A(f's_mov_b32 s{dst+2}, {nbytes:#x}'); A(f's_mov_b32 s{dst+3}, 0x20000')
```

```python
import sys; sys.path.insert(0, 'gen')
from blocks import *

def build(kvpol='nt', W=8, scale_out=None):
    A = Asm()
    descs = []
    launches = []
    def begin(name, nwg, lds, block=512):
        full = name + '_kernel'
        kernel_open(A, full); A.end = 'L_end_' + name
        prologue(A, nwg)
        launches.append(f'; @launch kernel={full} grid=({nwg},1,1) block=({block},1,1) lds={lds}')
        descs.append(descriptor(full))
    def end():
        A('s_waitcnt vmcnt(0)'); A(A.end + ':'); A('s_endpgm')

    def row_addr(v, pitch, off):
        A(f's_mul_i32 s{S_T0}, s{S_WAVE}, {pitch}'); A(f's_add_u32 s{S_T0}, s{S_T0}, {off}')
        A(f'v_lshl_add_u32 v{v}, v{V_LANE}, 4, s{S_T0}')
    def out64(pitch, off, relu):
        if relu: A('v_max_f32 v48, 0, v48'); A('v_max_f32 v49, 0, v49')
        A('v_cvt_pk_bf16_f32 v48, v48, v49'); A('v_min_u32 v48, -2, v48')
        A(f's_mul_i32 s{S_T0}, s{S_WAVE}, {pitch}'); A(f's_lshl_b32 s{S_T1}, s42, 1'); A(f's_add_u32 s{S_T0}, s{S_T0}, s{S_T1}')
        A(f's_add_u32 s{S_T0}, s{S_T0}, {off}'); A(f'v_lshl_add_u32 v49, v{V_LANE}, 2, s{S_T0}')
        A(f'buffer_store_dword v48, v49, s[{S_WS}:{S_WS+3}], 0 offen')

    begin('mod', 48, LDS64_BYTES)
    srd(A, S_W, P_WMOD, 512*3072*2); srd(A, S_A, P_C, 8192)
    A('s_lshl_b32 s42, s2, 6')
    row_addr(4, 1024, 0); A(f'buffer_load_dwordx4 v[8:11], v4, s[{S_A}:{S_A+3}], 0 offen')
    stage64_weights(A, S_W, 6144, 42, 4)
    A('s_waitcnt vmcnt(8)'); silu8(A, 8, 12, 16)
    A('s_waitcnt vmcnt(0)'); stage64_wread(A, 96, 4)
    stage64_compute(A, 12, 96, 40); out64(6144, WS_MOD, False)
    end()
    def lnstage(name, nwg, wptr, wpitch, xsrc, shoff, scoff, opitch, ooff, relu):
        begin(name, nwg, LDS64_BYTES)
        srd(A, S_W, wptr, 512*wpitch); srd(A, S_A, P_X, 8192)
        A('s_lshl_b32 s42, s2, 6')
        if xsrc == 'x': row_addr(4, 1024, 0); A(f'buffer_load_dwordx4 v[8:11], v4, s[{S_A}:{S_A+3}], 0 offen')
        else: row_addr(4, 1024, WS_X1); A(f'buffer_load_dwordx4 v[8:11], v4, s[{S_WS}:{S_WS+3}], 0 offen')
        row_addr(5, 6144, WS_MOD)
        A(f'buffer_load_dwordx4 v[12:15], v5, s[{S_WS}:{S_WS+3}], 0 offen offset:{0}') if False else None
        A(f's_mov_b32 s{S_T5}, {scoff}'); A(f'buffer_load_dwordx4 v[12:15], v5, s[{S_WS}:{S_WS+3}], s{S_T5} offen')
        A(f's_mov_b32 s{S_T5}, {shoff}'); A(f'buffer_load_dwordx4 v[16:19], v5, s[{S_WS}:{S_WS+3}], s{S_T5} offen')
        stage64_weights(A, S_W, wpitch, 42, 4)
        A('s_waitcnt vmcnt(8)')
        lnmod_pre(A, 12, 16, 20); lnmod(A, 8, 20, 12, 40)
        A('s_waitcnt vmcnt(0)'); stage64_wread(A, 96, 4)
        stage64_compute(A, 12, 96, 40); out64(opitch, ooff, relu)
        end()
    lnstage('q', 64, P_WQ, 8192, 'x', 0, 1024, 8192, WS_Q, False)
    begin('attn', 256, ATTN_LDS)
    R = AttnRegs
    srd(A, S_K, P_K, 0x4000000); srd(A, S_V, P_V, 0x4000000)
    A('s_lshr_b32 s42, s2, 2')
    attn_offsets(A, R)
    q_addr(A, R.S, R.S + 1, 42); A(f'buffer_load_dwordx4 v[{R.Q}:{R.Q+3}], v{R.S}, s[{S_WS}:{S_WS+3}], 0 offen')
    A(f's_lshl_b32 s43, s2, 18'); A(f's_lshl_b32 s{S_T0}, s{S_WAVE}, 15'); A(f's_add_u32 s43, s43, s{S_T0}')
    def buf(i): return R.BUF + 32 * (i % 4)
    def issue(n):
        t, isv = n >> 1, n & 1
        for i in range(8):
            A(f's_add_u32 s{S_T0}, s43, {t*8192 + i*1024}')
            b = buf(n) + 4*i
            A(f'buffer_load_dwordx4 v[{b}:{b+3}], v{R.VOFF if isv else R.KOFF}, s[{S_V if isv else S_K}:{(S_V if isv else S_K)+3}], s{S_T0} offen {kvpol}')
    issue(0); issue(1)
    for t in range(4):
        last = t == 3
        A('s_waitcnt vmcnt(8)')
        if not last: issue(2*t + 2)
        attn_scores(A, R, buf(2*t)); attn_softmax(A, R)
        A(f's_waitcnt vmcnt({0 if last else 8})')
        if not last: issue(2*t + 3)
        attn_pv(A, R, buf(2*t + 1))
    attn_combine(A, R, 0, 2, '')
    end()
    begin('wo', 256, 0x4000 + 4*1024 + 64*4)
    srd(A, S_W, P_WO, 4096*1024)
    A('s_lshr_b32 s42, s2, 3'); A('s_and_b32 s43, s2, 7')
    A(f'v_lshrrev_b32 v4, 3, v{V_LANE}'); A('v_lshlrev_b32 v4, 13, v4')
    A(f'v_and_b32 v5, 7, v{V_LANE}'); A('v_lshl_add_u32 v4, v5, 4, v4')
    A(f's_lshl_b32 s{S_T0}, s42, 17'); A(f's_lshl_b32 s{S_T1}, s43, 7'); A(f's_add_u32 s{S_T0}, s{S_T0}, s{S_T1}')
    A(f's_lshl_b32 s{S_T1}, s{S_WAVE}, 10'); A(f's_add_u32 s{S_T0}, s{S_T0}, s{S_T1}')
    A(f's_lshl_b32 s{S_T2}, s{S_WAVE}, 11')
    for i in range(2):
        A(f's_add_u32 m0, s{S_T2}, {i*1024}'); A(f's_add_u32 s{S_T1}, s{S_T0}, {i*64*1024}')
        A(f'buffer_load_dwordx4 v4, s[{S_W}:{S_W+3}], s{S_T1} offen lds')
    A('s_waitcnt vmcnt(0)'); A('s_barrier')
    skip = A.label('L_wo_skip')
    A(f's_cmp_ge_u32 s{S_WAVE}, 4'); A(f's_cbranch_scc1 {skip}')
    A(f's_lshl_b32 s{S_T4}, s{S_WAVE}, 5'); tr_addr(A, 4, 5, 128, S_T4)
    for u in range(4):
        for h in range(2): A(f'ds_read_b64_tr_b16 v[{96+4*u+2*h}:{96+4*u+2*h+1}], v4 offset:{(32*u+4*h)*128}')
    A(f'v_and_b32 v5, 7, v{V_LANE}'); A('v_lshlrev_b32 v5, 5, v5')
    A(f'v_bfe_u32 v6, v{V_LANE}, 3, 1'); A('v_lshl_add_u32 v5, v6, 1, v5')
    A(f's_lshr_b32 s{S_T0}, s42, 2'); A(f's_lshl_b32 s{S_T0}, s{S_T0}, 2'); A(f'v_add_u32 v5, s{S_T0}, v5')
    A(f's_and_b32 s{S_T1}, s42, 3')
    A(f's_lshl_b32 s{S_T0}, s{S_T1}, 3'); A(f's_add_u32 s{S_T0}, s{S_T0}, {WS_STATS}'); A(f'v_lshl_add_u32 v6, v5, 5, s{S_T0}')
    A(f's_lshl_b32 s{S_T0}, s{S_T1}, 9'); A(f's_lshl_b32 s{S_T2}, s{S_WAVE}, 7'); A(f's_add_u32 s{S_T0}, s{S_T0}, s{S_T2}')
    A(f's_add_u32 s{S_T0}, s{S_T0}, {WS_OPART}'); A(f'v_lshl_add_u32 v5, v5, 11, s{S_T0}')
    A(f'v_lshrrev_b32 v7, 4, v{V_LANE}'); A('v_lshl_add_u32 v5, v7, 5, v5')
    A(f'buffer_load_dwordx2 v[8:9], v6, s[{S_WS}:{S_WS+3}], 0 offen'); A(f'buffer_load_dwordx2 v[10:11], v6, s[{S_WS}:{S_WS+3}], 0 offen offset:32')
    for s in range(2):
        for k in range(2): A(f'buffer_load_dwordx4 v[{16+8*s+4*k}:{16+8*s+4*k+3}], v5, s[{S_WS}:{S_WS+3}], 0 offen offset:{2048*s+16*k}')
    A('s_waitcnt vmcnt(0)')
    A('v_max_f32 v12, v8, v10'); A('v_max_f32_dpp v12, v12, v12 row_ror:8 row_mask:0xf bank_mask:0xf')
    A('v_sub_f32 v8, v8, v12'); A('v_sub_f32 v10, v10, v12')
    A(f'v_mul_f32 v8, s{S_LOG2E}, v8'); A(f'v_mul_f32 v10, s{S_LOG2E}, v10'); A('v_exp_f32 v8, v8'); A('v_exp_f32 v10, v10')
    A('v_mul_f32 v12, v8, v9'); A('v_fmac_f32 v12, v10, v11'); A('v_add_f32_dpp v12, v12, v12 row_ror:8 row_mask:0xf bank_mask:0xf')
    A('v_rcp_f32 v12, v12'); A('v_mul_f32 v8, v8, v12'); A('v_mul_f32 v10, v10, v12')
    for k in range(8): A(f'v_mul_f32 v{16+k}, v{16+k}, v8')
    for k in range(8): A(f'v_fmac_f32 v{16+k}, v{24+k}, v10')
    for k in range(8): A(f'v_add_f32_dpp v{16+k}, v{16+k}, v{16+k} row_ror:8 row_mask:0xf bank_mask:0xf')
    for k in range(4): A(f'v_cvt_pk_bf16_f32 v{16+k}, v{16+2*k}, v{16+2*k+1}')
    A(f's_lshl_b32 s{S_T0}, s{S_WAVE}, 10'); A(f's_add_u32 s{S_T0}, s{S_T0}, 0x4000'); A(f'v_lshl_add_u32 v6, v{V_LANE}, 4, s{S_T0}')
    A('ds_write_b128 v6, v[16:19]')
    A(f'{skip}:')
    A('s_waitcnt lgkmcnt(0)'); A('s_barrier')
    A(f's_cmp_ge_u32 s{S_WAVE}, 4'); A(f's_cbranch_scc1 {A.end}')
    A(f'v_lshlrev_b32 v6, 4, v{V_LANE}')
    for u in range(4): A(f'ds_read_b128 v[{16+4*u}:{16+4*u+3}], v6 offset:{0x4000 + 1024*u}')
    for u in range(4):
        A(f's_waitcnt lgkmcnt({3-u})')
        A(f'v_mfma_f32_16x16x32_bf16 v[40:43], v[{96+4*u}:{96+4*u+3}], v[{16+4*u}:{16+4*u+3}], {"0" if u == 0 else "v[40:43]"}')
    A(f'v_and_b32 v5, 15, v{V_LANE}'); A('v_lshlrev_b32 v5, 13, v5'); A(f'v_lshrrev_b32 v7, 4, v{V_LANE}'); A('v_lshl_add_u32 v5, v7, 4, v5')
    A(f's_lshl_b32 s{S_T0}, s43, 16'); A(f's_lshl_b32 s{S_T1}, s42, 8'); A(f's_add_u32 s{S_T0}, s{S_T0}, s{S_T1}')
    A(f's_lshl_b32 s{S_T1}, s{S_WAVE}, 6'); A(f's_add_u32 s{S_T0}, s{S_T0}, s{S_T1}'); A(f's_add_u32 s{S_T0}, s{S_T0}, {WS_WOP}')
    for k in range(4): A(f'v_min_u32 v{40+k}, -2, v{40+k}')
    A('s_mov_b32 exec_lo, 0x00ff00ff'); A('s_mov_b32 exec_hi, 0x00ff00ff')
    A(f'buffer_store_dwordx4 v[40:43], v5, s[{S_WS}:{S_WS+3}], s{S_T0} offen')
    end()
    begin('x1', 64, 0, block=64)
    srd(A, S_A, P_X, 8192)
    A(f's_lshl_b32 s{S_T0}, s2, 13'); A(f's_add_u32 s{S_T0}, s{S_T0}, {WS_WOP}'); A(f'v_lshl_add_u32 v4, v{V_LANE}, 4, s{S_T0}')
    for i in range(8):
        A(f's_mov_b32 s{S_T1}, {i*1024}'); A(f'buffer_load_dwordx4 v[{16+4*i}:{16+4*i+3}], v4, s[{S_WS}:{S_WS+3}], s{S_T1} offen')
    A('s_lshr_b32 s42, s2, 3'); A('s_and_b32 s43, s2, 7')
    A(f'v_and_b32 v5, 15, v{V_LANE}'); A(f's_lshl_b32 s{S_T1}, s42, 7'); A(f'v_lshl_add_u32 v5, v5, 3, s{S_T1}')
    A(f's_lshl_b32 s{S_T2}, s43, 10'); A(f'buffer_load_dwordx2 v[8:9], v5, s[{S_A}:{S_A+3}], s{S_T2} offen')
    A(f's_mul_i32 s{S_T3}, s43, 6144'); A(f's_add_u32 s{S_T3}, s{S_T3}, {WS_MOD + 2048}')
    A(f'buffer_load_dwordx2 v[10:11], v5, s[{S_WS}:{S_WS+3}], s{S_T3} offen')
    A('s_waitcnt vmcnt(0)')
    for st in (16, 8, 4):
        for i in range(st): A(f'v_add_f32 v{16+i}, v{16+i}, v{16+st+i}')
    for k in range(4): rows_reduce(A, 'v_add_f32', 16 + k, 24 + k)
    A('v_cvt_pk_bf16_f32 v20, v16, v17'); A('v_cvt_pk_bf16_f32 v21, v18, v19')
    for i in range(2):
        A(f'v_lshlrev_b32 v{16+2*i}, 16, v{20+i}'); A(f'v_and_b32 v{17+2*i}, s{S_HI}, v{20+i}')
        A(f'v_lshlrev_b32 v{24+2*i}, 16, v{10+i}'); A(f'v_and_b32 v{25+2*i}, s{S_HI}, v{10+i}')
        A(f'v_lshlrev_b32 v{28+2*i}, 16, v{8+i}'); A(f'v_and_b32 v{29+2*i}, s{S_HI}, v{8+i}')
    for k in range(4): A(f'v_mul_f32 v{16+k}, v{16+k}, v{24+k}')
    A('v_cvt_pk_bf16_f32 v20, v16, v17'); A('v_cvt_pk_bf16_f32 v21, v18, v19')
    for i in range(2): A(f'v_lshlrev_b32 v{16+2*i}, 16, v{20+i}'); A(f'v_and_b32 v{17+2*i}, s{S_HI}, v{20+i}')
    for k in range(4): A(f'v_add_f32 v{16+k}, v{16+k}, v{28+k}')
    A('v_cvt_pk_bf16_f32 v20, v16, v17'); A('v_cvt_pk_bf16_f32 v21, v18, v19')
    A('v_min_u32 v20, -2, v20'); A('v_min_u32 v21, -2, v21')
    A(f's_add_u32 s{S_T2}, s{S_T2}, {WS_X1}'); A('s_mov_b64 exec, 0xffff')
    A(f'buffer_store_dwordx2 v[20:21], v5, s[{S_WS}:{S_WS+3}], s{S_T2} offen')
    end()
    lnstage('w1', 28, P_W1, 3584, 'x1', 3072, 4096, 3584, WS_H1, True)
    begin('w2', 32, 0xE000 + 8*8*80)
    srd(A, S_W, P_W2, 1792*1024); srd(A, S_A, P_OUT, 8192)
    A(f'v_lshrrev_b32 v4, 1, v{V_LANE}'); A('v_lshlrev_b32 v4, 10, v4'); A(f'v_and_b32 v5, 1, v{V_LANE}'); A('v_lshl_add_u32 v4, v5, 4, v4')
    A(f's_mul_i32 s{S_T0}, s{S_WAVE}, {224*1024}'); A(f's_lshl_b32 s{S_T1}, s2, 5'); A(f's_add_u32 s{S_T0}, s{S_T0}, s{S_T1}')
    A(f's_mul_i32 s{S_T4}, s{S_WAVE}, {224*32}')
    for i in range(7):
        A(f's_add_u32 m0, s{S_T4}, {i*1024}'); A(f's_add_u32 s{S_T1}, s{S_T0}, {i*32*1024}')
        A(f'buffer_load_dwordx4 v4, s[{S_W}:{S_W+3}], s{S_T1} offen lds')
    A(f'v_and_b32 v5, 7, v{V_LANE}'); A('v_mul_u32_u24 v5, 3584, v5'); A(f'v_lshrrev_b32 v6, 4, v{V_LANE}'); A('v_lshl_add_u32 v5, v6, 4, v5')
    A(f's_mul_i32 s{S_T0}, s{S_WAVE}, 448'); A(f's_add_u32 s{S_T0}, s{S_T0}, {WS_H1}')
    for u in range(7): A(f'buffer_load_dwordx4 v[{16+4*u}:{16+4*u+3}], v5, s[{S_WS}:{S_WS+3}], s{S_T0} offen offset:{64*u}')
    A(f'v_lshrrev_b32 v7, 3, v{V_LANE}'); A(f'v_and_b32 v8, 7, v{V_LANE}'); A(f's_lshl_b32 s{S_T1}, s2, 5'); A(f'v_lshl_add_u32 v8, v8, 2, s{S_T1}')
    A('v_lshl_add_u32 v9, v7, 10, v8'); A('v_mul_u32_u24 v10, 6144, v7'); A('v_add_u32 v10, v10, v8')
    A(f's_mov_b32 s{S_T2}, {WS_X1}'); A(f'buffer_load_dword v11, v9, s[{S_WS}:{S_WS+3}], s{S_T2} offen')
    A(f's_mov_b32 s{S_T2}, {WS_MOD + 5120}'); A(f'buffer_load_dword v12, v10, s[{S_WS}:{S_WS+3}], s{S_T2} offen')
    A('s_waitcnt vmcnt(0)')
    tr_addr(A, 4, 13, 32, S_T4)
    for u in range(7):
        for h in range(2): A(f'ds_read_b64_tr_b16 v[{96+4*u+2*h}:{96+4*u+2*h+1}], v4 offset:{(32*u+4*h)*32}')
    A('s_waitcnt lgkmcnt(0)')
    for u in range(7): A(f'v_mfma_f32_16x16x32_bf16 v[48:51], v[{96+4*u}:{96+4*u+3}], v[{16+4*u}:{16+4*u+3}], {"0" if u == 0 else "v[48:51]"}')
    A(f'v_and_b32 v5, 15, v{V_LANE}'); A('v_mul_u32_u24 v5, 80, v5'); A('v_lshl_add_u32 v5, v6, 4, v5')
    A(f's_mul_i32 s{S_T0}, s{S_WAVE}, 640'); A(f's_add_u32 s{S_T0}, s{S_T0}, 0xE000'); A(f'v_add_u32 v5, s{S_T0}, v5')
    A('s_mov_b32 exec_lo, 0x00ff00ff'); A('s_mov_b32 exec_hi, 0x00ff00ff')
    A('ds_write_b128 v5, v[48:51]')
    A('s_mov_b64 exec, -1')
    A('s_waitcnt lgkmcnt(0)'); A('s_barrier')
    A(f's_cmp_lg_u32 s{S_WAVE}, 0'); A(f's_cbranch_scc1 {A.end}')
    A('v_mul_u32_u24 v5, 80, v7'); A(f'v_and_b32 v6, 7, v{V_LANE}'); A('v_lshl_add_u32 v5, v6, 3, v5')
    for w in range(8): A(f'ds_read_b64 v[{16+2*w}:{16+2*w+1}], v5 offset:{0xE000 + 640*w}')
    A('s_waitcnt lgkmcnt(0)')
    for st in (8, 4, 2):
        for i in range(st): A(f'v_add_f32 v{16+i}, v{16+i}, v{16+st+i}')
    A('v_cvt_pk_bf16_f32 v20, v16, v17'); A('v_lshlrev_b32 v16, 16, v20'); A(f'v_and_b32 v17, s{S_HI}, v20')
    A('v_lshlrev_b32 v18, 16, v12'); A(f'v_and_b32 v19, s{S_HI}, v12')
    A('v_mul_f32 v16, v16, v18'); A('v_mul_f32 v17, v17, v19')
    A('v_cvt_pk_bf16_f32 v20, v16, v17'); A('v_lshlrev_b32 v16, 16, v20'); A(f'v_and_b32 v17, s{S_HI}, v20')
    A('v_lshlrev_b32 v18, 16, v11'); A(f'v_and_b32 v19, s{S_HI}, v11')
    A('v_add_f32 v16, v16, v18'); A('v_add_f32 v17, v17, v19')
    if scale_out:
        A(f'v_mul_f32 v16, {scale_out}, v16'); A(f'v_mul_f32 v17, {scale_out}, v17')
    A('v_cvt_pk_bf16_f32 v20, v16, v17')
    A(f'buffer_store_dword v20, v9, s[{S_A}:{S_A+3}], 0 offen')
    end()
    body, n = A.text()
    order = ['mod', 'q', 'attn', 'wo', 'x1', 'w1', 'w2']
    head = '\n'.join(launches) + '\n.amdgcn_target "amdgcn-amd-amdhsa--gfx950"\n.text\n'
    return head + body + '.section .rodata,"a"\n' + ''.join(descs)

if __name__ == '__main__':
    import struct
    out = sys.argv[1]
    kw = {}
    for a in sys.argv[2:]:
        k, v = a.split('=')
        if k == 'scale': kw['scale_out'] = hex(struct.unpack('<I', struct.pack('<f', float(v)))[0])
        elif k == 'kvpol': kw['kvpol'] = v.replace('+', ' ')
    open(out, 'w').write(build(**kw))
```

```python
from common import *

WS_MOD   = 0x000000
WS_Q     = 0x010000
WS_OPART = 0x020000
WS_STATS = 0x0A0000
WS_WOP   = 0x0B0000
WS_X1    = 0x130000
WS_H1    = 0x134000
WS_END   = 0x13C000
WS_BYTES = 0x10000000

P_X, P_K, P_V, P_WQ, P_WO, P_BX, P_W1, P_W2, P_C, P_WMOD, P_OUT, P_DBG, P_WS = [16 + 2*i for i in range(13)]
S_WS, S_K, S_V, S_W, S_A, S_B = 44, 48, 52, 56, 60, 64
S_WAVE = 3
S_LOG2E, S_HI, S_SELLO, S_SELHI, S_SCALE = 68, 69, 70, 71, 72
S_T0, S_T1, S_T2, S_T3, S_T4, S_T5 = 74, 75, 76, 77, 78, 79
V_LANE = 1

def prologue(A, nwg):
    A(f's_cmp_ge_u32 s2, {nwg}'); A('s_cbranch_scc1 ' + A.end)
    A('s_load_dwordx16 s[16:31], s[0:1], 0')
    A('s_load_dwordx8 s[32:39], s[0:1], 64')
    A('s_load_dwordx2 s[40:41], s[0:1], 96')
    A('v_lshrrev_b32 v2, 6, v0'); A(f'v_and_b32 v{V_LANE}, 63, v0')
    A(f'v_readfirstlane_b32 s{S_WAVE}, v2')
    A(f's_mov_b32 s{S_LOG2E}, 0x3fb8aa3b'); A(f's_mov_b32 s{S_HI}, 0xffff0000')
    A(f's_mov_b32 s{S_SELLO}, 0x05040100'); A(f's_mov_b32 s{S_SELHI}, 0x07060302')
    A(f's_mov_b32 s{S_SCALE}, 0x3db504f3')
    A('s_waitcnt lgkmcnt(0)')
    srd(A, S_WS, P_WS, WS_BYTES)

def unpack2(A, lo, hi, src):
    A(f'v_and_b32 v{hi}, s{S_HI}, v{src}') if hi != src else None
    A(f'v_lshlrev_b32 v{lo}, 16, v{src}')
    if hi == src: raise ValueError
def unpack8(A, dst, src):
    for i in range(4):
        A(f'v_lshlrev_b32 v{dst+2*i}, 16, v{src+i}'); A(f'v_and_b32 v{dst+2*i+1}, s{S_HI}, v{src+i}')
def round8(A, r, tmp):
    for i in range(4): A(f'v_cvt_pk_bf16_f32 v{tmp+i}, v{r+2*i}, v{r+2*i+1}')
    unpack8(A, r, tmp)
def round1(A, r):
    A(f'v_cvt_pk_bf16_f32 v{r}, v{r}, v{r}'); A(f'v_and_b32 v{r}, s{S_HI}, v{r}')

def rows_reduce(A, op, r, t):
    A(f'v_mov_b32 v{t}, v{r}'); A(f'v_permlane16_swap_b32 v{r}, v{t}'); A(f'{op} v{r}, v{r}, v{t}')
    A(f'v_mov_b32 v{t}, v{r}'); A(f'v_permlane32_swap_b32 v{r}, v{t}'); A(f'{op} v{r}, v{r}, v{t}')
def row_reduce(A, op, r, steps=(8, 4, 2, 1)):
    for n in steps: A(f'{op}_dpp v{r}, v{r}, v{r} row_ror:{n} row_mask:0xf bank_mask:0xf')
def wave_sum(A, r, t):
    row_reduce(A, 'v_add_f32', r); rows_reduce(A, 'v_add_f32', r, t)

def wtile_dma(A, srdreg, pitch, row0_s, colbyte_s, nins, lds_base_s, vtmp, pol='nt', rowmap=None):
    A(f'v_lshrrev_b32 v{vtmp}, 3, v{V_LANE}')
    A(f'v_mul_u32_u24 v{vtmp}, {pitch}, v{vtmp}')
    A(f'v_and_b32 v{vtmp+1}, 7, v{V_LANE}')
    A(f'v_lshl_add_u32 v{vtmp}, v{vtmp+1}, 4, v{vtmp}')
    A(f's_mul_i32 s{S_T0}, s{row0_s}, {pitch}'); A(f's_add_u32 s{S_T0}, s{S_T0}, s{colbyte_s}')
    for i in range(nins):
        A(f's_add_u32 m0, s{lds_base_s}, {i*1024}')
        A(f's_add_u32 s{S_T1}, s{S_T0}, {i*8*pitch}')
        A(f'buffer_load_dwordx4 v{vtmp}, s[{srdreg}:{srdreg+3}], s{S_T1} offen {pol} lds')

def tr_addr(A, v, t, pitch, base_s):
    A(f'v_lshrrev_b32 v{v}, 4, v{V_LANE}'); A(f'v_lshlrev_b32 v{v}, 3, v{v}')
    A(f'v_bfe_u32 v{t}, v{V_LANE}, 2, 2'); A(f'v_add_u32 v{v}, v{v}, v{t}')
    A(f'v_mul_u32_u24 v{v}, {pitch}, v{v}')
    A(f'v_and_b32 v{t}, 3, v{V_LANE}'); A(f'v_lshl_add_u32 v{v}, v{t}, 3, v{v}')
    A(f'v_add_u32 v{v}, s{base_s}, v{v}')

L_W   = 0
L_ACT = 0x10000
L_RED = 0x12400
ACT_PITCH, RED_B, RED_W = 1056, 272, 2176
LDS64_BYTES = L_RED + 8 * RED_W

def stage64_weights(A, srdreg, pitch, col0_s, vt, pol='nt'):
    A(f's_lshl_b32 s{S_T2}, s{S_WAVE}, 6'); A(f's_lshl_b32 s{S_T3}, s{col0_s}, 1')
    A(f's_lshl_b32 s{S_T4}, s{S_WAVE}, 13'); A(f's_add_u32 s{S_T4}, s{S_T4}, {L_W}')
    wtile_dma(A, srdreg, pitch, S_T2, S_T3, 8, S_T4, vt, pol)

def stage64_wread(A, wreg, vt):
    A(f's_lshl_b32 s{S_T4}, s{S_WAVE}, 13'); A(f's_add_u32 s{S_T4}, s{S_T4}, {L_W}')
    tr_addr(A, vt, vt + 1, 128, S_T4)
    for u in range(2):
        for c in range(4):
            for h in range(2):
                r = wreg + 16*u + 4*c + 2*h
                A(f'ds_read_b64_tr_b16 v[{r}:{r+1}], v{vt} offset:{(32*u + 4*h)*128 + 32*c}')

def stage64_compute(A, act, wreg, vt):
    a0, b, acc = vt, vt + 4, vt + 12
    A(f's_mul_i32 s{S_T0}, s{S_WAVE}, {ACT_PITCH}'); A(f's_add_u32 s{S_T0}, s{S_T0}, {L_ACT}')
    A(f'v_lshl_add_u32 v{a0}, v{V_LANE}, 4, s{S_T0}')
    A(f'ds_write_b128 v{a0}, v[{act}:{act+3}]')
    A(f'v_and_b32 v{a0+1}, 7, v{V_LANE}'); A(f'v_mul_u32_u24 v{a0+1}, {ACT_PITCH}, v{a0+1}')
    A(f'v_lshrrev_b32 v{a0+2}, 4, v{V_LANE}'); A(f'v_lshl_add_u32 v{a0+1}, v{a0+2}, 4, v{a0+1}')
    A(f's_lshl_b32 s{S_T0}, s{S_WAVE}, 7'); A(f's_add_u32 s{S_T0}, s{S_T0}, {L_ACT}')
    A(f'v_add_u32 v{a0+1}, s{S_T0}, v{a0+1}')
    A(f'v_and_b32 v{a0+3}, 15, v{V_LANE}'); A(f'v_mul_u32_u24 v{a0+3}, {RED_B}, v{a0+3}')
    A(f'v_lshl_add_u32 v{a0+3}, v{a0+2}, 4, v{a0+3}')
    A(f's_mul_i32 s{S_T0}, s{S_WAVE}, {RED_W}'); A(f's_add_u32 s{S_T0}, s{S_T0}, {L_RED}')
    A(f'v_add_u32 v{a0+3}, s{S_T0}, v{a0+3}')
    A('s_waitcnt lgkmcnt(0)'); A('s_barrier')
    A(f'ds_read_b128 v[{b}:{b+3}], v{a0+1}'); A(f'ds_read_b128 v[{b+4}:{b+7}], v{a0+1} offset:64')
    A('s_waitcnt lgkmcnt(1)')
    for c in range(4): A(f'v_mfma_f32_16x16x32_bf16 v[{acc+4*c}:{acc+4*c+3}], v[{wreg+4*c}:{wreg+4*c+3}], v[{b}:{b+3}], 0')
    A('s_waitcnt lgkmcnt(0)')
    for c in range(4): A(f'v_mfma_f32_16x16x32_bf16 v[{acc+4*c}:{acc+4*c+3}], v[{wreg+16+4*c}:{wreg+16+4*c+3}], v[{b+4}:{b+7}], v[{acc+4*c}:{acc+4*c+3}]')
    A('s_mov_b32 exec_lo, 0x00ff00ff'); A('s_mov_b32 exec_hi, 0x00ff00ff')
    for c in range(4): A(f'ds_write_b128 v{a0+3}, v[{acc+4*c}:{acc+4*c+3}] offset:{64*c}')
    A('s_mov_b64 exec, -1')
    A(f's_mul_i32 s{S_T0}, s{S_WAVE}, {RED_B}'); A(f's_add_u32 s{S_T0}, s{S_T0}, {L_RED}')
    A(f'v_lshl_add_u32 v{a0}, v{V_LANE}, 3, s{S_T0}')
    A('s_waitcnt lgkmcnt(0)'); A('s_barrier')
    A('s_mov_b32 exec_hi, 0')
    for w in range(8): A(f'ds_read_b64 v[{acc+2*w}:{acc+2*w+1}], v{a0} offset:{w*RED_W}')
    A('s_waitcnt lgkmcnt(0)')
    for k in range(2):
        A(f'v_add_f32 v{acc+k}, v{acc+k}, v{acc+2+k}'); A(f'v_add_f32 v{acc+4+k}, v{acc+4+k}, v{acc+6+k}')
        A(f'v_add_f32 v{acc+8+k}, v{acc+8+k}, v{acc+10+k}'); A(f'v_add_f32 v{acc+12+k}, v{acc+12+k}, v{acc+14+k}')
    for k in range(2):
        A(f'v_add_f32 v{acc+k}, v{acc+k}, v{acc+4+k}'); A(f'v_add_f32 v{acc+8+k}, v{acc+8+k}, v{acc+12+k}')
    for k in range(2): A(f'v_add_f32 v{vt+8+k}, v{acc+k}, v{acc+8+k}')

def silu8(A, c, out, t):
    unpack8(A, t, c)
    d, r, q, e = t + 8, t + 16, t + 24, t + 32
    for i in range(8): A(f'v_mul_f32 v{d+i}, s{S_LOG2E}, v{t+i}')
    for i in range(8): A(f'v_exp_f32 v{d+i}, -v{d+i}')
    for i in range(8): A(f'v_add_f32 v{d+i}, 1.0, v{d+i}')
    for i in range(8): A(f'v_rcp_f32 v{r+i}, v{d+i}')
    for i in range(8): A(f'v_mul_f32 v{q+i}, v{t+i}, v{r+i}')
    for i in range(8): A(f'v_fma_f32 v{e+i}, -v{q+i}, v{d+i}, v{t+i}')
    for i in range(8): A(f'v_fmac_f32 v{q+i}, v{e+i}, v{r+i}')
    for i in range(8): A(f'v_div_fixup_f32 v{q+i}, v{q+i}, v{d+i}, v{t+i}')
    for i in range(4): A(f'v_cvt_pk_bf16_f32 v{out+i}, v{q+2*i}, v{q+2*i+1}')

def lnmod_pre(A, sc, sh, t):
    unpack8(A, t, sc)
    for i in range(8): A(f'v_add_f32 v{t+i}, 1.0, v{t+i}')
    round8(A, t, sc)
    unpack8(A, t + 8, sh)

def lnmod(A, x, pre, out, t):
    xs, s, u, d = t, t + 8, t + 9, t + 10
    unpack8(A, xs, x)
    A(f'v_add_f32 v{s}, v{xs}, v{xs+1}'); A(f'v_add_f32 v{u}, v{xs+2}, v{xs+3}')
    A(f'v_add_f32 v{d}, v{xs+4}, v{xs+5}'); A(f'v_add_f32 v{d+1}, v{xs+6}, v{xs+7}')
    A(f'v_add_f32 v{s}, v{s}, v{u}'); A(f'v_add_f32 v{d}, v{d}, v{d+1}'); A(f'v_add_f32 v{s}, v{s}, v{d}')
    wave_sum(A, s, u)
    A(f'v_mul_f32 v{s}, 0x3b000000, v{s}')
    for i in range(8): A(f'v_sub_f32 v{d+i}, v{xs+i}, v{s}')
    A(f'v_mul_f32 v{u}, v{d}, v{d}'); A(f'v_mul_f32 v{d+8}, v{d+1}, v{d+1}')
    for i in range(2, 8, 2): A(f'v_fmac_f32 v{u}, v{d+i}, v{d+i}'); A(f'v_fmac_f32 v{d+8}, v{d+i+1}, v{d+i+1}')
    A(f'v_add_f32 v{u}, v{u}, v{d+8}')
    round1(A, s)
    for i in range(8): A(f'v_sub_f32 v{xs+i}, v{xs+i}, v{s}')
    wave_sum(A, u, d)
    round8(A, xs, d + 2)
    A(f'v_mul_f32 v{u}, 0x3b000000, v{u}'); round1(A, u)
    A(f'v_add_f32 v{u}, 0x3727c5ac, v{u}'); round1(A, u)
    A(f'v_sqrt_f32 v{u}, v{u}'); round1(A, u)
    A(f'v_rcp_f32 v{u}, v{u}')
    for i in range(8): A(f'v_mul_f32 v{xs+i}, v{xs+i}, v{u}')
    round8(A, xs, d)
    for i in range(8): A(f'v_mul_f32 v{xs+i}, v{xs+i}, v{pre+i}')
    round8(A, xs, d)
    for i in range(8): A(f'v_add_f32 v{xs+i}, v{xs+i}, v{pre+8+i}')
    for i in range(4): A(f'v_cvt_pk_bf16_f32 v{out+i}, v{xs+2*i}, v{xs+2*i+1}')

class AttnRegs:
    Q = 4
    M = 8; L = 9
    KOFF = 10; VOFF = 11
    S = 12
    B = 20
    ACC = 24
    VT = 32
    O = 44
    D = 76
    BUF = 108

def attn_scores(A, R, kbuf):
    for t in range(8):
        A(f'v_mfma_f32_16x16x32_bf16 v[{R.D+4*t}:{R.D+4*t+3}], v[{kbuf+4*t}:{kbuf+4*t+3}], v[{R.Q}:{R.Q+3}], 0')
    for grp in range(2):
        for t in range(4):
            for p in range(4):
                n = 4 * ((t - p) % 4)
                ctl = f'row_ror:{n}' if n else 'quad_perm:[0,1,2,3]'
                A(f'v_mov_b32_dpp v{R.ACC+4*grp+p}, v{R.D+4*(4*grp+t)+p} {ctl} row_mask:0xf bank_mask:{1<<t:#x}')
    for grp in range(2):
        a = R.ACC + 4*grp
        A(f'v_add_f32 v{a}, v{a}, v{a+1}'); A(f'v_add_f32 v{a+2}, v{a+2}, v{a+3}')
    for grp in range(2):
        a = R.ACC + 4*grp
        A(f'v_add_f32 v{R.S+grp}, v{a}, v{a+2}')
    s, t = R.S, R.S + 2
    A(f'v_cvt_pk_bf16_f32 v{t}, v{s}, v{s+1}')
    A(f'v_lshlrev_b32 v{s}, 16, v{t}'); A(f'v_and_b32 v{s+1}, s{S_HI}, v{t}')
    A(f'v_mul_f32 v{s}, s{S_SCALE}, v{s}'); A(f'v_mul_f32 v{s+1}, s{S_SCALE}, v{s+1}')
    A(f'v_cvt_pk_bf16_f32 v{t}, v{s}, v{s+1}')
    A(f'v_lshlrev_b32 v{s}, 16, v{t}'); A(f'v_and_b32 v{s+1}, s{S_HI}, v{t}')

def attn_softmax(A, R):
    s, t = R.S, R.S + 2
    skip = A.label('L_nomax')
    A(f'v_max_f32 v{t}, v{s}, v{s+1}')
    A(f'v_cmp_gt_f32 vcc, v{t}, v{R.M}')
    A(f's_cbranch_vccz {skip}')
    row_reduce(A, 'v_max_f32', t, (4, 8)); rows_reduce(A, 'v_max_f32', t, t + 1)
    A(f'v_max_f32 v{t}, v{t}, v{R.M}')
    A(f'v_sub_f32 v{t+1}, v{R.M}, v{t}'); A(f'v_mov_b32 v{R.M}, v{t}')
    A(f'v_mul_f32 v{t+1}, s{S_LOG2E}, v{t+1}'); A(f'v_exp_f32 v{t+1}, v{t+1}')
    A(f'v_mul_f32 v{R.L}, v{R.L}, v{t+1}')
    for i in range(32): A(f'v_mul_f32 v{R.O+i}, v{R.O+i}, v{t+1}')
    A(f'{skip}:')
    A(f'v_sub_f32 v{s}, v{s}, v{R.M}'); A(f'v_sub_f32 v{s+1}, v{s+1}, v{R.M}')
    A(f'v_mul_f32 v{s}, s{S_LOG2E}, v{s}'); A(f'v_mul_f32 v{s+1}, s{S_LOG2E}, v{s+1}')
    A(f'v_exp_f32 v{s}, v{s}'); A(f'v_exp_f32 v{s+1}, v{s+1}')
    A(f'v_cvt_pk_bf16_f32 v{R.B}, v{s}, v{s+1}')
    A(f'v_add_f32 v{R.L}, v{R.L}, v{s}'); A(f'v_add_f32 v{R.L}, v{R.L}, v{s+1}')
    for k in range(1, 4): A(f'v_mov_b32_dpp v{R.B+k}, v{R.B} row_ror:{16-4*k} row_mask:0xf bank_mask:0xf')

def attn_pv(A, R, vbuf):
    for d in range(8):
        vt = R.VT + 4 * (d % 3)
        sel = S_SELHI if d & 1 else S_SELLO
        for t in range(4):
            A(f'v_perm_b32 v{vt+t}, v{vbuf+4*(t+4)+(d>>1)}, v{vbuf+4*t+(d>>1)}, s{sel}')
        A(f'v_mfma_f32_16x16x32_bf16 v[{R.O+4*d}:{R.O+4*d+3}], v[{vt}:{vt+3}], v[{R.B}:{R.B+3}], v[{R.O+4*d}:{R.O+4*d+3}]')

def attn_offsets(A, R):
    t = R.S
    A(f'v_bfe_u32 v{t}, v{V_LANE}, 2, 2'); A(f'v_lshlrev_b32 v{t}, 8, v{t}')
    A(f'v_lshrrev_b32 v{t+1}, 4, v{V_LANE}'); A(f'v_lshl_add_u32 v{t}, v{t+1}, 6, v{t}')
    A(f'v_and_b32 v{t+1}, 3, v{V_LANE}'); A(f'v_lshl_add_u32 v{R.KOFF}, v{t+1}, 4, v{t}')
    A(f'v_lshlrev_b32 v{R.VOFF}, 4, v{V_LANE}')
    A(f'v_mov_b32 v{R.M}, 0xff7fffff'); A(f'v_mov_b32 v{R.L}, 0')
    for i in range(32): A(f'v_mov_b32 v{R.O+i}, 0')

def q_addr(A, v, t, pair_s):
    A(f'v_and_b32 v{v}, 3, v{V_LANE}'); A(f'v_lshlrev_b32 v{v}, 8, v{v}')
    A(f'v_lshrrev_b32 v{t}, 2, v{V_LANE}'); A(f'v_lshl_add_u32 v{v}, v{t}, 4, v{v}')
    A(f's_lshl_b32 s{S_T0}, s{pair_s}, 10'); A(f's_add_u32 s{S_T0}, s{S_T0}, {WS_Q}')
    A(f'v_add_u32 v{v}, s{S_T0}, v{v}')

def attn_combine(A, R, lbase, wgslot_s, pol):
    OW = 2048 + 64
    LS = lbase + 8 * OW
    t = R.S
    row_reduce(A, 'v_add_f32', R.L, (4, 8)); rows_reduce(A, 'v_add_f32', R.L, t)
    A(f'v_and_b32 v{t}, 3, v{V_LANE}'); A(f'v_mul_u32_u24 v{t+1}, 528, v{t}')
    A(f'v_lshrrev_b32 v{t+2}, 4, v{V_LANE}'); A(f'v_lshl_add_u32 v{t+1}, v{t+2}, 4, v{t+1}')
    A(f's_mul_i32 s{S_T0}, s{S_WAVE}, {OW}'); A(f's_add_u32 s{S_T0}, s{S_T0}, {lbase}')
    A(f'v_add_u32 v{t+1}, s{S_T0}, v{t+1}')
    A(f's_lshl_b32 s{S_T0}, s{S_WAVE}, 2'); A(f's_add_u32 s{S_T0}, s{S_T0}, {LS}')
    A(f'v_lshl_add_u32 v{t+2}, v{t}, 5, s{S_T0}')
    A('s_mov_b32 exec_lo, 0x000f000f'); A('s_mov_b32 exec_hi, 0x000f000f')
    for d in range(8): A(f'ds_write_b128 v{t+1}, v[{R.O+4*d}:{R.O+4*d+3}] offset:{64*d}')
    A('s_mov_b64 exec, 15')
    A(f'ds_write_b32 v{t+2}, v{R.M}'); A(f'ds_write_b32 v{t+2}, v{R.L} offset:128')
    A('s_mov_b64 exec, -1')
    A(f's_lshr_b32 s{S_T1}, s{S_WAVE}, 1'); A(f's_and_b32 s{S_T2}, s{S_WAVE}, 1')
    A(f's_mul_i32 s{S_T0}, s{S_T1}, 528'); A(f's_lshl_b32 s{S_T3}, s{S_T2}, 8'); A(f's_add_u32 s{S_T0}, s{S_T0}, s{S_T3}')
    A(f's_add_u32 s{S_T0}, s{S_T0}, {lbase}')
    A(f'v_lshl_add_u32 v{t}, v{V_LANE}, 2, s{S_T0}')
    A(f's_lshl_b32 s{S_T0}, s{S_T1}, 5'); A(f's_add_u32 s{S_T0}, s{S_T0}, {LS}'); A(f'v_mov_b32 v{t+1}, s{S_T0}')
    A(f's_lshl_b32 s{S_T0}, s{wgslot_s}, 11'); A(f's_lshl_b32 s{S_T3}, s{S_WAVE}, 8'); A(f's_add_u32 s{S_T0}, s{S_T0}, s{S_T3}')
    A(f's_add_u32 s{S_T0}, s{S_T0}, {WS_OPART}')
    A(f'v_lshl_add_u32 v{t+2}, v{V_LANE}, 2, s{S_T0}')
    A(f's_lshl_b32 s{S_T0}, s{wgslot_s}, 5'); A(f's_lshl_b32 s{S_T3}, s{S_T1}, 3'); A(f's_add_u32 s{S_T0}, s{S_T0}, s{S_T3}')
    A(f's_add_u32 s{S_T0}, s{S_T0}, {WS_STATS}'); A(f'v_mov_b32 v{t+3}, s{S_T0}')
    A('s_waitcnt lgkmcnt(0)'); A('s_barrier')
    m, l, o = R.D, R.D + 8, R.D + 16
    A(f'ds_read_b128 v[{m}:{m+3}], v{t+1}'); A(f'ds_read_b128 v[{m+4}:{m+7}], v{t+1} offset:16')
    for w in range(8): A(f'ds_read_b32 v{o+w}, v{t} offset:{w*OW}')
    A(f'ds_read_b128 v[{l}:{l+3}], v{t+1} offset:128'); A(f'ds_read_b128 v[{l+4}:{l+7}], v{t+1} offset:144')
    A('s_waitcnt lgkmcnt(10)')
    M = R.ACC
    A(f'v_max3_f32 v{M}, v{m}, v{m+1}, v{m+2}'); A(f'v_max3_f32 v{M+1}, v{m+3}, v{m+4}, v{m+5}')
    A(f'v_max3_f32 v{M}, v{M}, v{m+6}, v{m+7}'); A(f'v_max_f32 v{M}, v{M}, v{M+1}')
    for w in range(8): A(f'v_sub_f32 v{m+w}, v{m+w}, v{M}')
    for w in range(8): A(f'v_mul_f32 v{m+w}, s{S_LOG2E}, v{m+w}')
    for w in range(8): A(f'v_exp_f32 v{m+w}, v{m+w}')
    A('s_waitcnt lgkmcnt(2)')
    A(f'v_mul_f32 v{M+2}, v{o}, v{m}'); A(f'v_mul_f32 v{M+3}, v{o+1}, v{m+1}')
    for w in range(2, 8, 2): A(f'v_fmac_f32 v{M+2}, v{o+w}, v{m+w}'); A(f'v_fmac_f32 v{M+3}, v{o+w+1}, v{m+w+1}')
    A(f'v_add_f32 v{M+2}, v{M+2}, v{M+3}')
    A(f'v_min_u32 v{M+2}, -2, v{M+2}')
    A(f'buffer_store_dword v{M+2}, v{t+2}, s[{S_WS}:{S_WS+3}], 0 offen {pol}')
    A('s_waitcnt lgkmcnt(0)')
    A(f'v_mul_f32 v{M+1}, v{l}, v{m}')
    for w in range(1, 8): A(f'v_fmac_f32 v{M+1}, v{l+w}, v{m+w}')
    A(f'v_min_u32 v{M}, -2, v{M}'); A(f'v_min_u32 v{M+1}, -2, v{M+1}')
    done = A.label('L_nostat')
    A(f's_cmp_lg_u32 s{S_T2}, 0'); A(f's_cbranch_scc1 {done}')
    A('s_mov_b64 exec, 1')
    A(f'buffer_store_dwordx2 v[{M}:{M+1}], v{t+3}, s[{S_WS}:{S_WS+3}], 0 offen {pol}')
    A('s_mov_b64 exec, -1')
    A(f'{done}:')
ATTN_LDS = 8 * (2048 + 64) + 256
```

```python
import sys; sys.path.insert(0, 'gen')
from blocks import *

WS_CNT   = 0x140000
WS_STAMP = 0x200000
S_DBG = 80
S_PAIR, S_SLOT, S_ROLE, S_RIDX, S_KVB, S_STAT, S_HCLR, S_HQ, S_QV, S_SPIN, S_ITEM = 84, 85, 86, 87, 88, 89, 90, 91, 92, 93, 94
S_H, S_CG = 42, 43
S_STAMP0 = 4
ROLE_NONE, ROLE_MOD, ROLE_Q, ROLE_W1, ROLE_W2, ROLE_X1 = 0, 1, 2, 3, 4, 5
SC = 'sc1'

L_WO   = 0x10000 + 0x6800
L_COMB = L_WO + 0x4000
L_OX   = L_COMB + ATTN_LDS
LDS_BYTES = L_OX + 4096
assert LDS64_BYTES <= L_WO

class R:
    Q = 4; M = 8; L = 9; KOFF = 10; VOFF = 11; S = 12; B = 20; CLM = 22; CADDR = 23
    ACC = 24; D0 = 28; VT = 32; QT = 40; CLR = 44; QADDR = 45; DADDR = 46
    O = 48; D = 208
    K = [80, 96, 112, 128]; V = [144, 160, 176, 192]; KA = 208; VA = 224
    WWO = 96; WROLE = 112; PRE = 160; T0 = 176

class VM:
    def __init__(self, A): self.A = A; self.n = 0; self.done = 0
    def op(self, text): self.A(text); self.n += 1; return self.n
    def wait(self, tok):
        if tok <= self.done: return
        k = self.n - tok
        assert k <= 63
        self.A(f's_waitcnt vmcnt({k})'); self.done = tok
    def is_done(self, tok): return tok <= self.done
    def drained(self): self.done = self.n

def ws(): return f's[{S_WS}:{S_WS+3}]'

def scores16(A, kb):
    D = [R.D0, kb, kb + 4, kb + 8]
    for t in range(4):
        A(f'v_mfma_f32_16x16x32_bf16 v[{D[t]}:{D[t]+3}], v[{kb+4*t}:{kb+4*t+3}], v[{R.Q}:{R.Q+3}], 0')
    for t in range(4):
        for p in range(4):
            n = 4 * ((t - p) % 4)
            ctl = f'row_ror:{n}' if n else 'quad_perm:[0,1,2,3]'
            A(f'v_mov_b32_dpp v{R.ACC+p}, v{D[t]+p} {ctl} row_mask:0xf bank_mask:{1<<t:#x}')
    a, s, t = R.ACC, R.S, R.S + 1
    A(f'v_add_f32 v{a}, v{a}, v{a+1}'); A(f'v_add_f32 v{a+2}, v{a+2}, v{a+3}'); A(f'v_add_f32 v{s}, v{a}, v{a+2}')
    round1(A, s); A(f'v_mul_f32 v{s}, s{S_SCALE}, v{s}'); round1(A, s)
    skip = A.label('L_nomax')
    A(f'v_cmp_gt_f32 vcc, v{s}, v{R.M}')
    A(f's_cbranch_vccz {skip}')
    A(f'v_max_f32_dpp v{t}, v{s}, v{s} row_ror:4 row_mask:0xf bank_mask:0xf')
    row_reduce(A, 'v_max_f32', t, (8,)); rows_reduce(A, 'v_max_f32', t, t + 1)
    A(f'v_max_f32 v{t}, v{t}, v{R.M}')
    A(f'v_sub_f32 v{t+1}, v{R.M}, v{t}'); A(f'v_mov_b32 v{R.M}, v{t}')
    A(f'v_mul_f32 v{t+1}, s{S_LOG2E}, v{t+1}'); A(f'v_exp_f32 v{t+1}, v{t+1}')
    A(f'v_mul_f32 v{R.L}, v{R.L}, v{t+1}')
    for i in range(32): A(f'v_mul_f32 v{R.O+i}, v{R.O+i}, v{t+1}')
    A(f'{skip}:')
    A(f'v_sub_f32 v{s}, v{s}, v{R.M}'); A(f'v_mul_f32 v{s}, s{S_LOG2E}, v{s}'); A(f'v_exp_f32 v{s}, v{s}')
    A(f'v_mov_b32_dpp v{t}, v{s} row_ror:12 row_mask:0xf bank_mask:0xf')
    A(f'v_add_f32 v{R.L}, v{R.L}, v{s}')
    A(f'v_cvt_pk_bf16_f32 v{R.B}, v{s}, v{t}')
    A(f'v_mov_b32_dpp v{R.B+1}, v{R.B} row_ror:8 row_mask:0xf bank_mask:0xf')

def pv16(A, vb):
    for d in range(8):
        vt = R.VT + 2 * (d % 4)
        sel = S_SELHI if d & 1 else S_SELLO
        A(f'v_perm_b32 v{vt}, v{vb+4+(d>>1)}, v{vb+(d>>1)}, s{sel}')
        A(f'v_perm_b32 v{vt+1}, v{vb+12+(d>>1)}, v{vb+8+(d>>1)}, s{sel}')
        if d >= 1:
            e = d - 1; ve = R.VT + 2 * (e % 4)
            A(f'v_mfma_f32_16x16x16_bf16 v[{R.O+4*e}:{R.O+4*e+3}], v[{ve}:{ve+1}], v[{R.B}:{R.B+1}], v[{R.O+4*e}:{R.O+4*e+3}]')
    ve = R.VT + 2 * 3
    A(f'v_mfma_f32_16x16x16_bf16 v[{R.O+28}:{R.O+31}], v[{ve}:{ve+1}], v[{R.B}:{R.B+1}], v[{R.O+28}:{R.O+31}]')

def any_sentinel(A, regs, t):
    regs = list(regs)
    cur = None
    if len(regs) == 1: A(f'v_cmp_eq_u32 vcc, -1, v{regs[0]}'); return
    outs = []
    i = 0
    acc = [t, t + 1]
    first = [True, True]
    k = 0
    while i < len(regs):
        a = acc[k & 1]
        if first[k & 1]:
            if i + 2 < len(regs): A(f'v_max3_u32 v{a}, v{regs[i]}, v{regs[i+1]}, v{regs[i+2]}'); i += 3
            elif i + 1 < len(regs): A(f'v_max_u32 v{a}, v{regs[i]}, v{regs[i+1]}'); i += 2
            else: A(f'v_mov_b32 v{a}, v{regs[i]}'); i += 1
            first[k & 1] = False
        else:
            if i + 1 < len(regs): A(f'v_max3_u32 v{a}, v{a}, v{regs[i]}, v{regs[i+1]}'); i += 2
            else: A(f'v_max_u32 v{a}, v{a}, v{regs[i]}'); i += 1
        k += 1
    if not first[1]: A(f'v_max_u32 v{t}, v{t}, v{t+1}')
    A(f'v_cmp_eq_u32 vcc, -1, v{t}')

def spin_guard(A, top):
    A(f's_sub_u32 s{S_SPIN}, s{S_SPIN}, 1'); A(f's_cbranch_scc1 {A.end}'); A(f's_branch {top}')

def poll(A, loads, regs, t, first_issued=False, vm=None, tok=None):
    top, ok, chk = A.label('L_poll'), A.label('L_pollok'), A.label('L_pollchk')
    if first_issued:
        vm.wait(tok); A(f's_branch {chk}')
    A(f'{top}:')
    for l in loads: A(l)
    A('s_waitcnt vmcnt(0)')
    A(f'{chk}:')
    any_sentinel(A, regs, t)
    A(f's_cbranch_vccz {ok}')
    spin_guard(A, top)
    A(f'{ok}:')

def build(W=8, kvpol='nt', stamps=False, wpol='nt'):
    A = Asm(); A.end = 'L_end'
    name = KN + '_kernel'
    kernel_open(A, name)
    nst = [0]
    def stamp():
        if stamps:
            k = nst[0]; nst[0] += 1
            assert k < 12
            A(f's_memrealtime s[96:97]'); A('s_waitcnt lgkmcnt(0)'); A(f's_mov_b32 s{S_STAMP0+k}, s96')
    prologue(A, 256)
    stamp()
    srd(A, S_K, P_K, 0x4000000); srd(A, S_V, P_V, 0x4000000); srd(A, S_DBG, P_DBG, 256)
    A(f's_mov_b32 s{S_SPIN}, 200000')
    A(f's_and_b32 s{S_T0}, s2, 7'); A(f's_lshr_b32 s{S_T1}, s2, 3')
    A(f's_bcnt1_i32_b32 s{S_T2}, s{S_T0}'); A(f's_and_b32 s{S_T2}, s{S_T2}, 1')
    A(f's_lshl_b32 s{S_PAIR}, s{S_T1}, 1'); A(f's_or_b32 s{S_PAIR}, s{S_PAIR}, s{S_T2}')
    A(f's_lshr_b32 s{S_T2}, s{S_T0}, 1')
    A(f's_lshl_b32 s{S_SLOT}, s{S_PAIR}, 2'); A(f's_or_b32 s{S_SLOT}, s{S_SLOT}, s{S_T2}')
    A(f's_lshl_b32 s{S_KVB}, s{S_PAIR}, 20')
    A(f's_lshl_b32 s{S_STAT}, s{S_T2}, 17'); A(f's_lshl_b32 s{S_T3}, s{S_WAVE}, 14'); A(f's_add_u32 s{S_STAT}, s{S_STAT}, s{S_T3}')
    A(f's_add_u32 s{S_STAT}, s{S_STAT}, s{S_KVB}')
    A(f's_mov_b32 s{S_H}, s{S_T1}'); A(f's_mov_b32 s{S_CG}, s{S_T0}')
    A(f's_and_b32 s{S_T3}, s{S_T0}, 1'); A(f's_lshl_b32 s{S_RIDX}, s{S_T1}, 1'); A(f's_or_b32 s{S_RIDX}, s{S_RIDX}, s{S_T3}')
    A(f's_mov_b32 s{S_ROLE}, {ROLE_X1}')
    A(f's_cmp_eq_u32 s{S_T2}, 1'); A(f's_cselect_b32 s{S_ROLE}, {ROLE_Q}, s{S_ROLE}')
    A(f's_cmp_lt_u32 s{S_RIDX}, 48'); A(f's_cselect_b32 s{S_T4}, {ROLE_MOD}, {ROLE_NONE}')
    A(f's_cmp_eq_u32 s{S_T2}, 0'); A(f's_cselect_b32 s{S_ROLE}, s{S_T4}, s{S_ROLE}')
    A(f's_cmp_lt_u32 s{S_T1}, 28'); A(f's_cselect_b32 s{S_T4}, {ROLE_W1}, {ROLE_NONE}')
    A(f's_cmp_eq_u32 s{S_T0}, 4'); A(f's_cselect_b32 s{S_ROLE}, s{S_T4}, s{S_ROLE}')
    A(f's_cmp_eq_u32 s{S_T0}, 5'); A(f's_cselect_b32 s{S_ROLE}, {ROLE_W2}, s{S_ROLE}')
    A(f's_cmp_eq_u32 s{S_T2}, 2'); A(f's_cselect_b32 s{S_RIDX}, s{S_T1}, s{S_RIDX}')

    noclr = A.label('L_noclr')
    A(f's_cmp_lg_u32 s{S_WAVE}, 7'); A(f's_cbranch_scc1 {noclr}')
    for i in range(4): A(f'v_mov_b32 v{12+i}, -1')
    A(f'v_lshlrev_b32 v16, 4, v{V_LANE}')
    A(f's_lshl_b32 s{S_T0}, s{S_SLOT}, 11'); A(f's_add_u32 s{S_T0}, s{S_T0}, {WS_OPART}')
    A(f'buffer_store_dwordx4 v[12:15], v16, {ws()}, s{S_T0} offen {SC}')
    A(f'buffer_store_dwordx4 v[12:15], v16, {ws()}, s{S_T0} offen offset:1024 {SC}')
    A(f'v_lshrrev_b32 v17, 4, v{V_LANE}'); A('v_lshlrev_b32 v17, 13, v17'); A(f'v_and_b32 v18, 15, v{V_LANE}'); A('v_lshl_add_u32 v17, v18, 4, v17')
    A(f's_lshl_b32 s{S_T0}, s{S_CG}, 16'); A(f's_lshl_b32 s{S_T1}, s{S_H}, 8'); A(f's_add_u32 s{S_T0}, s{S_T0}, s{S_T1}'); A(f's_add_u32 s{S_T0}, s{S_T0}, {WS_WOP}')
    A(f'buffer_store_dwordx4 v[12:15], v17, {ws()}, s{S_T0} offen {SC}')
    A(f's_add_u32 s{S_T0}, s{S_T0}, 0x8000')
    A(f'buffer_store_dwordx4 v[12:15], v17, {ws()}, s{S_T0} offen {SC}')
    A(f's_mov_b32 s{S_T1}, 0'); A(f's_lshl_b32 s{S_T0}, s{S_SLOT}, 11'); A(f's_add_u32 s{S_T0}, s{S_T0}, {WS_OPART}')
    A(f's_lshl_b32 s{S_T2}, s{S_RIDX}, 7')
    for role, pitch, off in ((ROLE_MOD, 6144, WS_MOD), (ROLE_Q, 8192, WS_Q), (ROLE_W1, 3584, WS_H1)):
        A(f's_add_u32 s{S_T3}, s{S_T2}, {off}')
        A(f's_cmp_eq_u32 s{S_ROLE}, {role}'); A(f's_cselect_b32 s{S_T0}, s{S_T3}, s{S_T0}'); A(f's_cselect_b32 s{S_T1}, {pitch}, s{S_T1}')
    A(f's_and_b32 s{S_T3}, s{S_RIDX}, 7'); A(f's_lshl_b32 s{S_T3}, s{S_T3}, 10'); A(f's_lshr_b32 s{S_T4}, s{S_RIDX}, 3'); A(f's_lshl_b32 s{S_T4}, s{S_T4}, 7')
    A(f's_add_u32 s{S_T3}, s{S_T3}, s{S_T4}'); A(f's_add_u32 s{S_T3}, s{S_T3}, {WS_X1}')
    A(f's_cmp_eq_u32 s{S_ROLE}, {ROLE_X1}'); A(f's_cselect_b32 s{S_T0}, s{S_T3}, s{S_T0}')
    A(f'v_lshrrev_b32 v17, 3, v{V_LANE}'); A(f'v_mul_lo_u32 v17, v17, s{S_T1}'); A(f'v_and_b32 v18, 7, v{V_LANE}'); A('v_lshl_add_u32 v17, v18, 4, v17')
    A(f'buffer_store_dwordx4 v[12:15], v17, {ws()}, s{S_T0} offen {SC}')
    A('s_mov_b64 exec, 3')
    A(f's_lshl_b32 s{S_T0}, s{S_SLOT}, 5'); A(f's_add_u32 s{S_T0}, s{S_T0}, {WS_STATS}')
    A(f'buffer_store_dwordx4 v[12:15], v16, {ws()}, s{S_T0} offen {SC}')
    A('s_mov_b64 exec, 1')
    nocnt = A.label('L_nocnt')
    A(f's_and_b32 s{S_T0}, s{S_SLOT}, 3'); A(f's_cbranch_scc1 {nocnt}')
    A('v_mov_b32 v17, 0'); A(f's_lshl_b32 s{S_T0}, s{S_PAIR}, 8'); A(f's_add_u32 s{S_T0}, s{S_T0}, {WS_CNT}')
    A(f'buffer_store_dword v17, v16, {ws()}, s{S_T0} offen {SC}')
    A(f'{nocnt}:')
    A('v_mov_b32 v17, 1'); A(f's_and_b32 s{S_T0}, s2, 15'); A(f's_lshl_b32 s{S_T0}, s{S_T0}, 2')
    A('s_waitcnt vmcnt(0)')
    A(f'buffer_atomic_add v17, v16, s[{S_DBG}:{S_DBG+3}], s{S_T0} offen {SC}')
    nomodc = A.label('L_nomodc')
    A(f's_cmp_lg_u32 s{S_ROLE}, {ROLE_MOD}'); A(f's_cbranch_scc1 {nomodc}')
    A(f's_cmp_ge_u32 s{S_RIDX}, 16'); A(f's_cbranch_scc1 {nomodc}')
    A(f'buffer_atomic_add v17, v16, s[{S_DBG}:{S_DBG+3}], 0 offen offset:128 {SC}')
    A(f'{nomodc}:')
    A('s_waitcnt vmcnt(0)')
    A('s_mov_b64 exec, -1')
    A(f'{noclr}:')

    attn_offsets(A, R)
    q_addr(A, R.QADDR, R.S, S_PAIR)
    A(f'v_and_b32 v{R.DADDR}, 15, v{V_LANE}'); A(f'v_lshlrev_b32 v{R.DADDR}, 2, v{R.DADDR}')
    A(f's_lshl_b32 s{S_T0}, s{S_PAIR}, 8'); A(f's_add_u32 s{S_T0}, s{S_T0}, {WS_CNT}'); A(f'v_mov_b32 v{R.CADDR}, s{S_T0}')
    A(f's_mov_b32 s{S_HCLR}, 0'); A(f's_mov_b32 s{S_HQ}, 0')

    def kvload(vm, buf, isv, base_s, off):
        toks = []
        for i in range(4):
            A(f's_add_u32 s{S_T0}, s{base_s}, {off + i*1024}')
            sreg = S_V if isv else S_K
            toks.append(vm.op(f'buffer_load_dwordx4 v[{buf+4*i}:{buf+4*i+3}], v{R.VOFF if isv else R.KOFF}, s[{sreg}:{sreg+3}], s{S_T0} offen {kvpol}'))
        return toks
    def row_addr(v, pitch, off):
        A(f's_mul_i32 s{S_T0}, s{S_WAVE}, {pitch}'); A(f's_add_u32 s{S_T0}, s{S_T0}, {off}')
        A(f'v_lshl_add_u32 v{v}, v{V_LANE}, 4, s{S_T0}')
    def out64(acc, pitch, off, relu):
        if relu: A(f'v_max_f32 v{acc}, 0, v{acc}'); A(f'v_max_f32 v{acc+1}, 0, v{acc+1}')
        A(f'v_cvt_pk_bf16_f32 v{acc}, v{acc}, v{acc+1}'); A(f'v_min_u32 v{acc}, -2, v{acc}')
        A(f's_mul_i32 s{S_T0}, s{S_WAVE}, {pitch}'); A(f's_lshl_b32 s{S_T1}, s{S_RIDX}, 7'); A(f's_add_u32 s{S_T0}, s{S_T0}, s{S_T1}')
        A(f's_add_u32 s{S_T0}, s{S_T0}, {off}'); A(f'v_lshlrev_b32 v{acc+1}, 2, v{V_LANE}')
        A(f'buffer_store_dword v{acc}, v{acc+1}, {ws()}, s{S_T0} offen {SC}')
        A('s_mov_b64 exec, -1')

    l_q, l_plain, l_static = A.label('L_role_q'), A.label('L_plain'), A.label('L_static')
    A(f's_cmp_eq_u32 s{S_ROLE}, {ROLE_Q}'); A(f's_cbranch_scc1 {l_q}')
    A(f's_cmp_lg_u32 s{S_ROLE}, {ROLE_MOD}'); A(f's_cbranch_scc1 {l_plain}')
    vm = VM(A)
    srd(A, S_W, P_WMOD, 512*6144); srd(A, S_A, P_C, 8192)
    A(f's_lshl_b32 s{S_T5}, s{S_RIDX}, 6')
    row_addr(144, 1024, 0); A(f'buffer_load_dwordx4 v[148:151], v144, s[{S_A}:{S_A+3}], 0 offen')
    stage64_weights(A, S_W, 6144, S_T5, 144, wpol)
    kvload(vm, R.K[0], 0, S_STAT, 0); kvload(vm, R.K[1], 0, S_STAT, 4096)
    A('s_waitcnt vmcnt(16)'); silu8(A, 148, 152, 160)
    A('s_waitcnt vmcnt(8)'); stage64_wread(A, 112, 144)
    stage64_compute(A, 152, 112, 160); out64(168, 6144, WS_MOD, False)
    A('s_waitcnt vmcnt(0)')
    A(f's_branch {l_static}')
    A(f'{l_q}:')
    srd(A, S_W, P_WQ, 512*8192); srd(A, S_A, P_X, 8192)
    A(f's_lshl_b32 s{S_T5}, s{S_RIDX}, 6')
    row_addr(144, 1024, 0); A(f'buffer_load_dwordx4 v[148:151], v144, s[{S_A}:{S_A+3}], 0 offen')
    stage64_weights(A, S_W, 8192, S_T5, 144, wpol)
    kvload(vm, R.K[0], 0, S_STAT, 0); kvload(vm, R.K[1], 0, S_STAT, 4096)
    top, ok = A.label('L_cm'), A.label('L_cmok')
    A('v_mov_b32 v146, 128')
    A(f'{top}:'); A(f'buffer_load_dword v147, v146, s[{S_DBG}:{S_DBG+3}], 0 offen {SC}'); A('s_waitcnt vmcnt(0)')
    A('v_cmp_eq_u32 vcc, 16, v147'); A(f's_cbranch_vccnz {ok}'); spin_guard(A, top); A(f'{ok}:')
    stage64_wread(A, 112, 144)
    row_addr(146, 6144, WS_MOD)
    poll(A, [f'buffer_load_dwordx4 v[152:155], v146, {ws()}, 0 offen offset:1024 {SC}', f'buffer_load_dwordx4 v[156:159], v146, {ws()}, 0 offen {SC}'],
         range(152, 160), 160)
    lnmod_pre(A, 152, 156, 160); lnmod(A, 148, 160, 152, 176)
    stage64_compute(A, 152, 112, 160); out64(168, 8192, WS_Q, False)
    A('s_waitcnt vmcnt(0)')
    A(f's_branch {l_static}')
    A(f'{l_plain}:')
    kvload(vm, R.K[0], 0, S_STAT, 0); kvload(vm, R.K[1], 0, S_STAT, 4096)
    A(f'{l_static}:')
    stamp()

    vm = VM(A); vm.n = 8
    tokK = {0: 4, 1: 8}
    srd(A, S_W, P_WO, 4096*1024)
    l_now = A.label('L_nowo')
    A(f's_cmp_ge_u32 s{S_WAVE}, 4'); A(f's_cbranch_scc1 {l_now}')
    A(f'v_lshrrev_b32 v12, 1, v{V_LANE}'); A('v_and_b32 v13, 15, v12'); A('v_lshlrev_b32 v13, 13, v13')
    A('v_lshrrev_b32 v12, 4, v12'); A('v_lshl_add_u32 v13, v12, 10, v13')
    A(f'v_and_b32 v12, 1, v{V_LANE}'); A('v_lshl_add_u32 v13, v12, 4, v13')
    A(f's_lshl_b32 s{S_T0}, s{S_H}, 17'); A(f's_lshl_b32 s{S_T1}, s{S_CG}, 7'); A(f's_add_u32 s{S_T0}, s{S_T0}, s{S_T1}')
    A(f's_lshl_b32 s{S_T1}, s{S_WAVE}, 5'); A(f's_add_u32 s{S_T0}, s{S_T0}, s{S_T1}')
    A(f's_lshl_b32 s{S_T2}, s{S_WAVE}, 12'); A(f's_add_u32 s{S_T2}, s{S_T2}, {L_WO}')
    for i in range(4):
        A(f's_add_u32 m0, s{S_T2}, {i*1024}'); A(f's_add_u32 s{S_T1}, s{S_T0}, {i*2048}')
        A(f'buffer_load_dwordx4 v13, s[{S_W}:{S_W+3}], s{S_T1} offen lds')
    A(f'{l_now}:')
    l_w2, l_wdone = A.label('L_dw2'), A.label('L_dwdone')
    A(f's_cmp_eq_u32 s{S_ROLE}, {ROLE_W2}'); A(f's_cbranch_scc1 {l_w2}')
    A(f's_cmp_lg_u32 s{S_ROLE}, {ROLE_W1}'); A(f's_cbranch_scc1 {l_wdone}')
    srd(A, S_W, P_W1, 512*3584); A(f's_lshl_b32 s{S_T5}, s{S_RIDX}, 6')
    stage64_weights(A, S_W, 3584, S_T5, 12, wpol)
    A(f's_branch {l_wdone}')
    A(f'{l_w2}:')
    srd(A, S_W, P_W2, 1792*1024)
    A(f'v_lshrrev_b32 v12, 1, v{V_LANE}'); A('v_lshlrev_b32 v12, 10, v12'); A(f'v_and_b32 v13, 1, v{V_LANE}'); A('v_lshl_add_u32 v12, v13, 4, v12')
    A(f's_mul_i32 s{S_T0}, s{S_WAVE}, {224*1024}'); A(f's_lshl_b32 s{S_T1}, s{S_RIDX}, 5'); A(f's_add_u32 s{S_T0}, s{S_T0}, s{S_T1}')
    A(f's_mul_i32 s{S_T4}, s{S_WAVE}, {224*32}')
    for i in range(7):
        A(f's_add_u32 m0, s{S_T4}, {i*1024}'); A(f's_add_u32 s{S_T1}, s{S_T0}, {i*32*1024}')
        A(f'buffer_load_dwordx4 v12, s[{S_W}:{S_W+3}], s{S_T1} offen lds')
    A(f'{l_wdone}:')
    vm = VM(A)

    seq = [(R.K[2], 0, 8192), (R.K[3], 0, 12288), (R.V[0], 1, 0), (R.V[1], 1, 4096), (R.V[2], 1, 8192), (R.V[3], 1, 12288)]
    pend = []
    hist = []
    tokV = {}
    def check_pending(force=False):
        while pend and (force or vm.is_done(pend[0][1])):
            kind, tok = pend.pop(0)
            vm.wait(tok)
            if kind == 'clr':
                A(f'v_add_u32_dpp v{R.CLR}, v{R.CLR}, v{R.CLR} row_ror:8 row_mask:0xf bank_mask:0xf')
                for n in (4, 2, 1): A(f'v_add_u32_dpp v{R.CLR}, v{R.CLR}, v{R.CLR} row_ror:{n} row_mask:0xf bank_mask:0xf')
                A(f'v_readfirstlane_b32 s{S_T1}, v{R.CLR}'); A(f's_cmp_eq_u32 s{S_T1}, 256'); A(f's_cselect_b32 s{S_HCLR}, 1, s{S_HCLR}')
            else:
                sk = A.label('L_noq')
                any_sentinel(A, range(R.QT, R.QT + 4), R.S)
                A(f's_cbranch_vccnz {sk}')
                A(f's_cmp_eq_u32 s{S_QV}, 0'); A(f's_cbranch_scc1 {sk}')
                for i in range(4): A(f'v_mov_b32 v{R.Q+i}, v{R.QT+i}')
                A(f's_mov_b32 s{S_HQ}, 1')
                A(f'{sk}:')
    def look_clr(): pend.append(('clr', vm.op(f'buffer_load_dword v{R.CLR}, v{R.DADDR}, s[{S_DBG}:{S_DBG+3}], 0 offen {SC}')))
    def look_q():
        A(f's_mov_b32 s{S_QV}, s{S_HCLR}')
        pend.append(('q', vm.op(f'buffer_load_dwordx4 v[{R.QT}:{R.QT+3}], v{R.QADDR}, {ws()}, 0 offen {SC}')))
    for n, (buf, isv, off) in enumerate(seq):
        if not pend:
            if n in (0, 1, 2): look_clr()
            else: look_q()
        for i in range(4):
            if len(hist) >= W - 1: vm.wait(hist[len(hist) - (W - 1)])
            check_pending()
            A(f's_add_u32 s{S_T0}, s{S_STAT}, {off + i*1024}')
            sreg = S_V if isv else S_K
            hist.append(vm.op(f'buffer_load_dwordx4 v[{buf+4*i}:{buf+4*i+3}], v{R.VOFF if isv else R.KOFF}, s[{sreg}:{sreg+3}], s{S_T0} offen {kvpol}'))
        if isv: tokV[n - 2] = hist[-1]
    check_pending(force=True)
    stamp()
    ok, top = A.label('L_hclr'), A.label('L_wclr')
    A(f's_cmp_lg_u32 s{S_HCLR}, 0'); A(f's_cbranch_scc1 {ok}')
    A(f'{top}:'); A(f'buffer_load_dword v{R.CLR}, v{R.DADDR}, s[{S_DBG}:{S_DBG+3}], 0 offen {SC}'); A('s_waitcnt vmcnt(0)')
    for n in (8, 4, 2, 1): A(f'v_add_u32_dpp v{R.CLR}, v{R.CLR}, v{R.CLR} row_ror:{n} row_mask:0xf bank_mask:0xf')
    A(f'v_cmp_eq_u32 vcc, 0x100, v{R.CLR}'); A(f's_cbranch_vccnz {ok}'); spin_guard(A, top); A(f'{ok}:')

    def claim():
        A(f'v_mov_b32 v{R.CLM}, 1'); A('s_mov_b64 exec, 1')
        t = vm.op(f'buffer_atomic_add v{R.CLM}, v{R.CADDR}, {ws()}, 0 offen sc0 {SC}')
        A('s_mov_b64 exec, -1'); return t
    T0 = R.T0
    row_addr(240, 6144, WS_MOD)
    l_a, l_b = A.label('L_ta'), A.label('L_tb')
    A(f's_mov_b32 s{S_T4}, 3072'); A(f's_mov_b32 s{S_T5}, 4096')
    A(f's_cmp_eq_u32 s{S_ROLE}, {ROLE_X1}'); A(f's_cbranch_scc0 {l_a}')
    A(f's_and_b32 s{S_T1}, s{S_RIDX}, 7'); A(f's_mul_i32 s{S_T0}, s{S_T1}, 6144'); A(f's_lshr_b32 s{S_T2}, s{S_RIDX}, 3'); A(f's_lshl_b32 s{S_T2}, s{S_T2}, 7')
    A(f's_add_u32 s{S_T0}, s{S_T0}, s{S_T2}'); A(f's_add_u32 s{S_T0}, s{S_T0}, {WS_MOD}')
    A(f'v_and_b32 v240, 7, v{V_LANE}'); A(f'v_lshl_add_u32 v240, v240, 4, s{S_T0}')
    A(f's_mov_b32 s{S_T4}, 2048'); A(f's_mov_b32 s{S_T5}, 2048')
    A(f'{l_a}:')
    A(f's_cmp_eq_u32 s{S_ROLE}, {ROLE_W2}'); A(f's_cbranch_scc0 {l_b}')
    A(f'v_lshrrev_b32 v240, 3, v{V_LANE}'); A('v_mul_u32_u24 v240, 6144, v240'); A(f's_lshl_b32 s{S_T0}, s{S_RIDX}, 5'); A(f's_add_u32 s{S_T0}, s{S_T0}, {WS_MOD}')
    A(f'v_add_u32 v240, s{S_T0}, v240')
    A(f's_mov_b32 s{S_T4}, 5120'); A(f's_mov_b32 s{S_T5}, 5136')
    A(f'{l_b}:')
    tl = [f'buffer_load_dwordx4 v[244:247], v240, {ws()}, s{S_T4} offen {SC}', f'buffer_load_dwordx4 v[248:251], v240, {ws()}, s{S_T5} offen {SC}']
    A(f's_mov_b32 s98, s{S_T4}'); A(f's_mov_b32 s99, s{S_T5}')
    tl = [x.replace(f's{S_T4} ', 's98 ').replace(f's{S_T5} ', 's99 ') for x in tl]
    tc = claim()
    for x in tl: tt = vm.op(x)
    have = A.label('L_haveq')
    A(f's_cmp_lg_u32 s{S_HQ}, 0'); A(f's_cbranch_scc1 {have}')
    poll(A, [f'buffer_load_dwordx4 v[{R.Q}:{R.Q+3}], v{R.QADDR}, {ws()}, 0 offen {SC}'], range(R.Q, R.Q + 4), R.S)
    A(f'{have}:')
    stamp()
    NITEM = 128
    def issue_item(kb, vb):
        A(f's_lshl_b32 s{S_T1}, s{S_ITEM}, 12'); A(f's_add_u32 s{S_T1}, s{S_T1}, s{S_KVB}'); A(f's_add_u32 s{S_T1}, s{S_T1}, 0x80000')
        tk = kvload(vm, kb, 0, S_T1, 0); c = claim(); tv = kvload(vm, vb, 1, S_T1, 0)
        return tk[-1], c, tv[-1]
    for n in range(2):
        vm.wait(tokV[n]); scores16(A, R.K[n]); pv16(A, R.V[n])
    vm.wait(tc)
    l_nodyn = A.label('L_nodyn')
    A(f'v_readfirstlane_b32 s{S_ITEM}, v{R.CLM}')
    A(f's_cmp_ge_u32 s{S_ITEM}, {NITEM}'); A(f's_cbranch_scc1 {l_nodyn}')
    def finish_static():
        for n in range(2, 4):
            vm.wait(tokV[n]); scores16(A, R.K[n]); pv16(A, R.V[n])
        poll(A, tl, range(244, 252), R.S, first_issued=True, vm=vm, tok=tt)
        tail_prep()
    def tail_prep():
        sk = A.label('L_tp_wo')
        A(f's_cmp_ge_u32 s{S_WAVE}, 4'); A(f's_cbranch_scc1 {sk}')
        A(f's_lshl_b32 s{S_T4}, s{S_WAVE}, 12'); A(f's_add_u32 s{S_T4}, s{S_T4}, {L_WO}'); tr_addr(A, 12, 13, 32, S_T4)
        for u in range(4):
            for h in range(2): A(f'ds_read_b64_tr_b16 v[{R.WWO+4*u+2*h}:{R.WWO+4*u+2*h+1}], v12 offset:{(32*u+4*h)*32}')
        A(f'{sk}:')
        n1, n2 = A.label('L_tp_1'), A.label('L_tp_2')
        A(f's_cmp_lg_u32 s{S_ROLE}, {ROLE_W1}'); A(f's_cbranch_scc1 {n1}')
        stage64_wread(A, R.WROLE, 12)
        lnmod_pre(A, 248, 244, R.PRE)
        A(f'{n1}:')
        A(f's_cmp_lg_u32 s{S_ROLE}, {ROLE_W2}'); A(f's_cbranch_scc1 {n2}')
        A(f's_mul_i32 s{S_T4}, s{S_WAVE}, {224*32}'); tr_addr(A, 12, 13, 32, S_T4)
        for u in range(7):
            for h in range(2): A(f'ds_read_b64_tr_b16 v[{R.WROLE+4*u+2*h}:{R.WROLE+4*u+2*h+1}], v12 offset:{(32*u+4*h)*32}')
        A(f'{n2}:')
        A('s_waitcnt lgkmcnt(0)')
    save = (vm.n, vm.done)
    tk, tc, tv = issue_item(R.KA, R.VA)
    finish_static()
    loop, l_lastA, l_lastB, l_end = A.label('L_loop'), A.label('L_lastA'), A.label('L_lastB'), A.label('L_streamend')
    A(f'{loop}:')
    for (kc, vc, kn, vn, last) in ((R.KA, R.VA, R.K[0], R.V[0], l_lastA), (R.K[0], R.V[0], R.KA, R.VA, l_lastB)):
        A('s_waitcnt vmcnt(4)')
        A(f'v_readfirstlane_b32 s{S_ITEM}, v{R.CLM}')
        A(f's_cmp_ge_u32 s{S_ITEM}, {NITEM}'); A(f's_cbranch_scc1 {last}')
        issue_item(kn, vn)
        scores16(A, kc)
        A('s_waitcnt vmcnt(9)')
        pv16(A, vc)
    A(f's_branch {loop}')
    for (kc, vc, last) in ((R.KA, R.VA, l_lastA), (R.K[0], R.V[0], l_lastB)):
        A(f'{last}:')
        scores16(A, kc); A('s_waitcnt vmcnt(0)'); pv16(A, vc)
        A(f's_branch {l_end}')
    A(f'{l_nodyn}:')
    vm.n, vm.done = save
    finish_static()
    A(f'{l_end}:')
    stamp()

    attn_combine(A, R, L_COMB, S_SLOT, SC)
    stamp()
    skip = A.label('L_wo_skip')
    A(f's_cmp_ge_u32 s{S_WAVE}, 4'); A(f's_cbranch_scc1 {skip}')
    A(f'v_and_b32 v5, 7, v{V_LANE}'); A('v_lshlrev_b32 v5, 5, v5')
    A(f'v_bfe_u32 v6, v{V_LANE}, 3, 1'); A('v_lshl_add_u32 v5, v6, 1, v5')
    A(f's_and_b32 s{S_T0}, s{S_H}, 0x1c'); A(f'v_add_u32 v5, s{S_T0}, v5')
    A(f's_and_b32 s{S_T1}, s{S_H}, 3')
    A(f's_lshl_b32 s{S_T0}, s{S_T1}, 3'); A(f's_add_u32 s{S_T0}, s{S_T0}, {WS_STATS}'); A(f'v_lshl_add_u32 v6, v5, 5, s{S_T0}')
    A(f's_lshl_b32 s{S_T0}, s{S_T1}, 9'); A(f's_lshl_b32 s{S_T2}, s{S_WAVE}, 7'); A(f's_add_u32 s{S_T0}, s{S_T0}, s{S_T2}')
    A(f's_add_u32 s{S_T0}, s{S_T0}, {WS_OPART}'); A(f'v_lshl_add_u32 v5, v5, 11, s{S_T0}')
    A(f'v_lshrrev_b32 v7, 4, v{V_LANE}'); A('v_lshl_add_u32 v5, v7, 5, v5')
    loads = [f'buffer_load_dwordx2 v[8:9], v6, {ws()}, 0 offen {SC}', f'buffer_load_dwordx2 v[10:11], v6, {ws()}, 0 offen offset:32 {SC}']
    for s in range(2):
        for k in range(2): loads.append(f'buffer_load_dwordx4 v[{16+8*s+4*k}:{16+8*s+4*k+3}], v5, {ws()}, 0 offen offset:{2048*s+16*k} {SC}')
    A(f's_lshl_b32 s{S_T0}, s{S_WAVE}, 10'); A(f's_add_u32 s{S_T0}, s{S_T0}, {L_OX}'); A(f'v_lshl_add_u32 v14, v{V_LANE}, 4, s{S_T0}')
    poll(A, loads, list(range(8, 12)) + list(range(16, 32)), 12)
    A('v_max_f32 v12, v8, v10'); A('v_max_f32_dpp v12, v12, v12 row_ror:8 row_mask:0xf bank_mask:0xf')
    A('v_sub_f32 v8, v8, v12'); A('v_sub_f32 v10, v10, v12')
    A(f'v_mul_f32 v8, s{S_LOG2E}, v8'); A(f'v_mul_f32 v10, s{S_LOG2E}, v10'); A('v_exp_f32 v8, v8'); A('v_exp_f32 v10, v10')
    A('v_mul_f32 v12, v8, v9'); A('v_fmac_f32 v12, v10, v11'); A('v_add_f32_dpp v12, v12, v12 row_ror:8 row_mask:0xf bank_mask:0xf')
    A('v_rcp_f32 v12, v12'); A('v_mul_f32 v8, v8, v12'); A('v_mul_f32 v10, v10, v12')
    for k in range(8): A(f'v_mul_f32 v{16+k}, v{16+k}, v8')
    for k in range(8): A(f'v_fmac_f32 v{16+k}, v{24+k}, v10')
    for k in range(8): A(f'v_add_f32_dpp v{16+k}, v{16+k}, v{16+k} row_ror:8 row_mask:0xf bank_mask:0xf')
    for k in range(4): A(f'v_cvt_pk_bf16_f32 v{16+k}, v{16+2*k}, v{16+2*k+1}')
    A('ds_write_b128 v14, v[16:19]')
    A(f'v_and_b32 v5, 15, v{V_LANE}'); A('v_lshlrev_b32 v5, 13, v5'); A('v_lshl_add_u32 v5, v7, 4, v5')
    A(f'v_lshlrev_b32 v6, 4, v{V_LANE}'); A(f'v_add_u32 v6, {L_OX}, v6')
    A(f'{skip}:')
    A('s_waitcnt lgkmcnt(0)'); A('s_barrier')
    stamp()
    skip2 = A.label('L_wo_skip2')
    A(f's_cmp_ge_u32 s{S_WAVE}, 4'); A(f's_cbranch_scc1 {skip2}')
    for u in range(4): A(f'ds_read_b128 v[{16+4*u}:{16+4*u+3}], v6 offset:{1024*u}')
    A(f's_lshl_b32 s{S_T0}, s{S_CG}, 16'); A(f's_lshl_b32 s{S_T1}, s{S_H}, 8'); A(f's_add_u32 s{S_T0}, s{S_T0}, s{S_T1}')
    A(f's_lshl_b32 s{S_T1}, s{S_WAVE}, 6'); A(f's_add_u32 s{S_T0}, s{S_T0}, s{S_T1}'); A(f's_add_u32 s{S_T0}, s{S_T0}, {WS_WOP}')
    for u in range(4):
        A(f's_waitcnt lgkmcnt({3-u})')
        A(f'v_mfma_f32_16x16x32_bf16 v[40:43], v[{R.WWO+4*u}:{R.WWO+4*u+3}], v[{16+4*u}:{16+4*u+3}], {"0" if u == 0 else "v[40:43]"}')
    for k in range(4): A(f'v_min_u32 v{40+k}, -2, v{40+k}')
    A('s_mov_b32 exec_lo, 0x00ff00ff'); A('s_mov_b32 exec_hi, 0x00ff00ff')
    A(f'buffer_store_dwordx4 v[40:43], v5, {ws()}, s{S_T0} offen {SC}')
    A('s_mov_b64 exec, -1')
    A(f'{skip2}:')
    stamp()

    l_x1, l_w1, l_w2, l_fin = A.label('L_x1'), A.label('L_w1'), A.label('L_w2'), A.label('L_fin')
    A(f's_cmp_eq_u32 s{S_ROLE}, {ROLE_X1}'); A(f's_cbranch_scc1 {l_x1}')
    A(f's_cmp_eq_u32 s{S_ROLE}, {ROLE_W1}'); A(f's_cbranch_scc1 {l_w1}')
    A(f's_cmp_eq_u32 s{S_ROLE}, {ROLE_W2}'); A(f's_cbranch_scc1 {l_w2}')
    A(f's_branch {l_fin}')
    A(f'{l_x1}:')
    A(f's_cmp_lg_u32 s{S_WAVE}, 4'); A(f's_cbranch_scc1 {l_fin}')
    srd(A, S_A, P_X, 8192)
    A(f's_and_b32 s{S_T2}, s{S_RIDX}, 7'); A(f's_lshl_b32 s{S_T2}, s{S_T2}, 10'); A(f's_lshr_b32 s{S_T1}, s{S_RIDX}, 3'); A(f's_lshl_b32 s{S_T1}, s{S_T1}, 7')
    A(f's_add_u32 s{S_T2}, s{S_T2}, s{S_T1}')
    A(f'v_and_b32 v5, 15, v{V_LANE}'); A('v_lshlrev_b32 v5, 3, v5')
    A(f'buffer_load_dwordx2 v[8:9], v5, s[{S_A}:{S_A+3}], s{S_T2} offen')
    A(f'v_lshrrev_b32 v6, 1, v{V_LANE}'); A('v_and_b32 v6, 7, v6'); A('v_lshlrev_b32 v6, 2, v6')
    for i in range(4): A(f'ds_bpermute_b32 v{12+i}, v6, v{244+i}')
    A(f'v_and_b32 v6, 1, v{V_LANE}'); A('v_cmp_eq_u32 vcc, 1, v6'); A('s_waitcnt lgkmcnt(0)')
    A('v_cndmask_b32 v10, v12, v14, vcc'); A('v_cndmask_b32 v11, v13, v15, vcc')
    for i in range(2): A(f'v_lshlrev_b32 v{56+2*i}, 16, v{10+i}'); A(f'v_and_b32 v{57+2*i}, s{S_HI}, v{10+i}')
    A('s_waitcnt vmcnt(0)')
    for i in range(2): A(f'v_lshlrev_b32 v{60+2*i}, 16, v{8+i}'); A(f'v_and_b32 v{61+2*i}, s{S_HI}, v{8+i}')
    A(f's_lshl_b32 s{S_T0}, s{S_RIDX}, 13'); A(f's_add_u32 s{S_T0}, s{S_T0}, {WS_WOP}'); A(f'v_lshl_add_u32 v4, v{V_LANE}, 4, s{S_T0}')
    A('v_add_u32 v6, 0x1000, v4')
    A(f's_add_u32 s{S_T2}, s{S_T2}, {WS_X1}')
    poll(A, [f'buffer_load_dwordx4 v[{16+4*i}:{16+4*i+3}], v{4 if i < 4 else 6}, {ws()}, 0 offen offset:{(i&3)*1024} {SC}' for i in range(8)], range(16, 48), 12)
    for st in (16, 8, 4):
        for i in range(st): A(f'v_add_f32 v{16+i}, v{16+i}, v{16+st+i}')
    for k in range(4): A(f'v_mov_b32 v{24+k}, v{16+k}')
    for k in range(4): A(f'v_permlane16_swap_b32 v{16+k}, v{24+k}')
    for k in range(4): A(f'v_add_f32 v{16+k}, v{16+k}, v{24+k}')
    for k in range(4): A(f'v_mov_b32 v{24+k}, v{16+k}')
    for k in range(4): A(f'v_permlane32_swap_b32 v{16+k}, v{24+k}')
    for k in range(4): A(f'v_add_f32 v{16+k}, v{16+k}, v{24+k}')
    A('v_cvt_pk_bf16_f32 v20, v16, v17'); A('v_cvt_pk_bf16_f32 v21, v18, v19')
    for i in range(2): A(f'v_lshlrev_b32 v{16+2*i}, 16, v{20+i}'); A(f'v_and_b32 v{17+2*i}, s{S_HI}, v{20+i}')
    for k in range(4): A(f'v_mul_f32 v{16+k}, v{16+k}, v{56+k}')
    A('v_cvt_pk_bf16_f32 v20, v16, v17'); A('v_cvt_pk_bf16_f32 v21, v18, v19')
    for i in range(2): A(f'v_lshlrev_b32 v{16+2*i}, 16, v{20+i}'); A(f'v_and_b32 v{17+2*i}, s{S_HI}, v{20+i}')
    for k in range(4): A(f'v_add_f32 v{16+k}, v{16+k}, v{60+k}')
    A('v_cvt_pk_bf16_f32 v20, v16, v17'); A('v_cvt_pk_bf16_f32 v21, v18, v19')
    A('v_min_u32 v20, -2, v20'); A('v_min_u32 v21, -2, v21')
    A('s_mov_b64 exec, 0xffff')
    A(f'buffer_store_dwordx2 v[20:21], v5, {ws()}, s{S_T2} offen {SC}')
    A('s_mov_b64 exec, -1')
    A(f's_branch {l_fin}')
    A(f'{l_w1}:')
    row_addr(4, 1024, WS_X1)
    poll(A, [f'buffer_load_dwordx4 v[8:11], v4, {ws()}, 0 offen {SC}'], range(8, 12), 12)
    lnmod(A, 8, R.PRE, 12, 16)
    stage64_compute(A, 12, R.WROLE, 40); out64(48, 3584, WS_H1, True)
    A(f's_branch {l_fin}')
    A(f'{l_w2}:')
    srd(A, S_A, P_OUT, 8192)
    A(f'v_and_b32 v5, 7, v{V_LANE}'); A('v_mul_u32_u24 v5, 3584, v5'); A(f'v_lshrrev_b32 v6, 4, v{V_LANE}'); A('v_lshl_add_u32 v5, v6, 4, v5')
    A(f's_mul_i32 s{S_T0}, s{S_WAVE}, 448'); A(f's_add_u32 s{S_T0}, s{S_T0}, {WS_H1}'); A(f'v_add_u32 v5, s{S_T0}, v5')
    A(f'v_lshrrev_b32 v7, 3, v{V_LANE}'); A(f'v_and_b32 v8, 7, v{V_LANE}'); A(f's_lshl_b32 s{S_T1}, s{S_RIDX}, 5'); A(f'v_lshl_add_u32 v9, v8, 2, s{S_T1}')
    A('v_lshl_add_u32 v9, v7, 10, v9')
    A(f'v_add_u32 v10, {WS_X1}, v9')
    A('v_mov_b32 v12, v244')
    for i in range(1, 8): A(f'v_cmp_eq_u32 vcc, {i}, v8'); A(f'v_cndmask_b32 v12, v12, v{244+i}, vcc')
    A(f'v_lshlrev_b32 v56, 16, v12'); A(f'v_and_b32 v57, s{S_HI}, v12')
    A(f'v_and_b32 v13, 15, v{V_LANE}'); A('v_mul_u32_u24 v13, 80, v13'); A('v_lshl_add_u32 v13, v6, 4, v13')
    A(f's_mul_i32 s{S_T0}, s{S_WAVE}, 640'); A(f's_add_u32 s{S_T0}, s{S_T0}, {L_RED}'); A(f'v_add_u32 v13, s{S_T0}, v13')
    A('v_mul_u32_u24 v14, 80, v7'); A('v_lshl_add_u32 v14, v8, 3, v14'); A(f'v_add_u32 v14, {L_RED}, v14')
    poll(A, [f'buffer_load_dword v11, v10, {ws()}, 0 offen {SC}'] +
            [f'buffer_load_dwordx4 v[{16+4*u}:{16+4*u+3}], v5, {ws()}, 0 offen offset:{64*u} {SC}' for u in range(7)], [11] + list(range(16, 44)), 52)
    for u in range(7): A(f'v_mfma_f32_16x16x32_bf16 v[48:51], v[{R.WROLE+4*u}:{R.WROLE+4*u+3}], v[{16+4*u}:{16+4*u+3}], {"0" if u == 0 else "v[48:51]"}')
    A('s_mov_b32 exec_lo, 0x00ff00ff'); A('s_mov_b32 exec_hi, 0x00ff00ff')
    A('ds_write_b128 v13, v[48:51]')
    A('s_mov_b64 exec, -1')
    A('s_waitcnt lgkmcnt(0)'); A('s_barrier')
    A(f's_cmp_lg_u32 s{S_WAVE}, 0'); A(f's_cbranch_scc1 {l_fin}')
    for w in range(8): A(f'ds_read_b64 v[{16+2*w}:{16+2*w+1}], v14 offset:{640*w}')
    A('v_lshlrev_b32 v58, 16, v11'); A(f'v_and_b32 v59, s{S_HI}, v11')
    A('s_waitcnt lgkmcnt(0)')
    for st in (8, 4, 2):
        for i in range(st): A(f'v_add_f32 v{16+i}, v{16+i}, v{16+st+i}')
    A('v_cvt_pk_bf16_f32 v20, v16, v17'); A('v_lshlrev_b32 v16, 16, v20'); A(f'v_and_b32 v17, s{S_HI}, v20')
    A('v_mul_f32 v16, v16, v56'); A('v_mul_f32 v17, v17, v57')
    A('v_cvt_pk_bf16_f32 v20, v16, v17'); A('v_lshlrev_b32 v16, 16, v20'); A(f'v_and_b32 v17, s{S_HI}, v20')
    A('v_add_f32 v16, v16, v58'); A('v_add_f32 v17, v17, v59')
    A('v_cvt_pk_bf16_f32 v20, v16, v17')
    A(f'buffer_store_dword v20, v9, s[{S_A}:{S_A+3}], 0 offen')
    A(f'{l_fin}:')
    stamp()
    if stamps:
        A(f's_lshl_b32 s{S_T0}, s2, 3'); A(f's_add_u32 s{S_T0}, s{S_T0}, s{S_WAVE}'); A(f's_lshl_b32 s{S_T0}, s{S_T0}, 6'); A(f's_add_u32 s{S_T0}, s{S_T0}, {WS_STAMP}')
        for k in range(12): A(f'v_mov_b32 v{16+k}, s{S_STAMP0+k}')
        A('v_mov_b32 v4, 0'); A('s_mov_b64 exec, 1')
        for k in range(3): A(f'buffer_store_dwordx4 v[{16+4*k}:{16+4*k+3}], v4, {ws()}, s{S_T0} offen offset:{16*k}')
    A('L_end:'); A('s_endpgm')
    body, n = A.text()
    head = open('cdna_kernels/' + KN + '.s.ref').read().split('; Override launch')[0]
    head += f'; @launch grid=(256,1,1) block=(512,1,1) lds={LDS_BYTES}\n.amdgcn_target "amdgcn-amd-amdhsa--gfx950"\n.text\n'
    return head + body + '.section .rodata,"a"\n' + descriptor(name)

if __name__ == '__main__':
    out = sys.argv[1]; kw = {}
    for a in sys.argv[2:]:
        k, v = a.split('=')
        kw[k] = int(v) if v.lstrip('-').isdigit() else v.replace('+', ' ')
    open(out, 'w').write(build(**kw))
```

```python
import sys; sys.path.insert(0, 'gen')
from blocks import *

WS_MOD  = 0x000000
WS_Q    = 0x010000
WS_FLAT = 0x020000
WS_OP   = 0x020000
WS_WOP  = 0x0A0000
WS_FP   = 0x120000
WS_ST   = 0x1A0000
WS_X1   = 0x1A8000
FLAT_SHARE = (0x1AA000 - WS_FLAT) // 256
WS_EPOCH = 0x1C0000
WS_FLAG  = 0x1C1000
WS_MFLAG = 0x1D8000
WS_CNT   = 0x1B0000
WS_STAMP = 0x200000
S_TAG = 80
S_PAIR, S_SPLIT, S_ROLE, S_RIDX, S_KVB, S_STAT, S_HCLR, S_HQ, S_QV, S_SPIN, S_ITEM = 84, 85, 86, 87, 88, 89, 90, 91, 92, 93, 94
S_H, S_CG = 42, 43
S_P0 = 4
ROLE_NONE, ROLE_MOD, ROLE_Q, ROLE_FFN, ROLE_RED = 0, 1, 2, 3, 4
SC = 'sc1'

L_WO   = LDS64_BYTES
L_COMB = L_WO + 0x4000
OW = 2048 + 64
L_CST  = L_COMB + 8 * OW
L_OX   = L_CST + 256
L_H1   = L_OX + 4 * 768
LDS_BYTES = L_H1 + 8 * 160

class R:
    Q = 4; M = 8; L = 9; KOFF = 10; VOFF = 11; S = 12; B = 20; CLM = 22; CADDR = 23
    ACC = 24; D0 = 28; VT = 32; QT = 40; CLR = 28; QADDR = 45; DADDR = 46; EP = 47
    O = 48; D = 208
    K = [80, 96, 112, 128]; V = [144, 160, 176, 192]; KA = 208; VA = 224
    WWO = 96; WROLE = 112; PRE = 160; TV = 240
    A_CW = 176; A_CS = 177; A_CR = 178; A_CM = 179; A_OP = 180; A_AG = 181; A_AS = 182; A_OXW = 183; A_OXR = 184; A_WS = 185; A_WOT = 186

class VM:
    def __init__(self, A): self.A = A; self.n = 0; self.done = 0
    def op(self, text): self.A(text); self.n += 1; return self.n
    def wait(self, tok):
        if tok <= self.done: return
        k = self.n - int(tok)
        assert k <= 63
        self.A(f's_waitcnt vmcnt({k})'); self.done = tok
    def maybe(self):
        return self.n + 0.5
    def is_done(self, tok): return tok <= self.done
    def drained(self): self.done = self.n

def ws(): return f's[{S_WS}:{S_WS+3}]'

def scores16(A, kb):
    D = [R.D0, kb, kb + 4, kb + 8]
    for t in range(4):
        A(f'v_mfma_f32_16x16x32_bf16 v[{D[t]}:{D[t]+3}], v[{kb+4*t}:{kb+4*t+3}], v[{R.Q}:{R.Q+3}], 0')
    for t in range(4):
        for p in range(4):
            n = 4 * ((t - p) % 4)
            ctl = f'row_ror:{n}' if n else 'quad_perm:[0,1,2,3]'
            A(f'v_mov_b32_dpp v{R.ACC+p}, v{D[t]+p} {ctl} row_mask:0xf bank_mask:{1<<t:#x}')
    a, s, t = R.ACC, R.S, R.S + 1
    A(f'v_add_f32 v{a}, v{a}, v{a+1}'); A(f'v_add_f32 v{a+2}, v{a+2}, v{a+3}'); A(f'v_add_f32 v{s}, v{a}, v{a+2}')
    round1(A, s); A(f'v_mul_f32 v{s}, s{S_SCALE}, v{s}'); round1(A, s)
    skip = A.label('L_nomax')
    A(f'v_cmp_gt_f32 vcc, v{s}, v{R.M}')
    A(f's_cbranch_vccz {skip}')
    A(f'v_max_f32_dpp v{t}, v{s}, v{s} row_ror:4 row_mask:0xf bank_mask:0xf')
    row_reduce(A, 'v_max_f32', t, (8,)); rows_reduce(A, 'v_max_f32', t, t + 1)
    A(f'v_max_f32 v{t}, v{t}, v{R.M}')
    A(f'v_sub_f32 v{t+1}, v{R.M}, v{t}'); A(f'v_mov_b32 v{R.M}, v{t}')
    A(f'v_mul_f32 v{t+1}, s{S_LOG2E}, v{t+1}'); A(f'v_exp_f32 v{t+1}, v{t+1}')
    A(f'v_mul_f32 v{R.L}, v{R.L}, v{t+1}')
    for i in range(32): A(f'v_mul_f32 v{R.O+i}, v{R.O+i}, v{t+1}')
    A(f'{skip}:')
    A(f'v_sub_f32 v{s}, v{s}, v{R.M}'); A(f'v_mul_f32 v{s}, s{S_LOG2E}, v{s}'); A(f'v_exp_f32 v{s}, v{s}')
    A(f'v_mov_b32_dpp v{t}, v{s} row_ror:12 row_mask:0xf bank_mask:0xf')
    A(f'v_add_f32 v{R.L}, v{R.L}, v{s}')
    A(f'v_cvt_pk_bf16_f32 v{R.B}, v{s}, v{t}')
    A(f'v_mov_b32_dpp v{R.B+1}, v{R.B} row_ror:8 row_mask:0xf bank_mask:0xf')

def pv16(A, vb):
    for d in range(8):
        vt = R.VT + 2 * (d % 4)
        sel = S_SELHI if d & 1 else S_SELLO
        A(f'v_perm_b32 v{vt}, v{vb+4+(d>>1)}, v{vb+(d>>1)}, s{sel}')
        A(f'v_perm_b32 v{vt+1}, v{vb+12+(d>>1)}, v{vb+8+(d>>1)}, s{sel}')
        if d >= 1:
            e = d - 1; ve = R.VT + 2 * (e % 4)
            A(f'v_mfma_f32_16x16x16_bf16 v[{R.O+4*e}:{R.O+4*e+3}], v[{ve}:{ve+1}], v[{R.B}:{R.B+1}], v[{R.O+4*e}:{R.O+4*e+3}]')
    ve = R.VT + 2 * 3
    A(f'v_mfma_f32_16x16x16_bf16 v[{R.O+28}:{R.O+31}], v[{ve}:{ve+1}], v[{R.B}:{R.B+1}], v[{R.O+28}:{R.O+31}]')

def any_sentinel(A, regs, t):
    regs = list(regs)
    cur = None
    if len(regs) == 1: A(f'v_cmp_eq_u32 vcc, -1, v{regs[0]}'); return
    outs = []
    i = 0
    acc = [t, t + 1]
    first = [True, True]
    k = 0
    while i < len(regs):
        a = acc[k & 1]
        if first[k & 1]:
            if i + 2 < len(regs): A(f'v_max3_u32 v{a}, v{regs[i]}, v{regs[i+1]}, v{regs[i+2]}'); i += 3
            elif i + 1 < len(regs): A(f'v_max_u32 v{a}, v{regs[i]}, v{regs[i+1]}'); i += 2
            else: A(f'v_mov_b32 v{a}, v{regs[i]}'); i += 1
            first[k & 1] = False
        else:
            if i + 1 < len(regs): A(f'v_max3_u32 v{a}, v{a}, v{regs[i]}, v{regs[i+1]}'); i += 2
            else: A(f'v_max_u32 v{a}, v{a}, v{regs[i]}'); i += 1
        k += 1
    if not first[1]: A(f'v_max_u32 v{t}, v{t}, v{t+1}')
    A(f'v_cmp_eq_u32 vcc, -1, v{t}')

def spin_guard(A, top):
    if getattr(A, 'sleep', 0): A(f's_sleep {A.sleep}')
    A(f's_sub_u32 s{S_SPIN}, s{S_SPIN}, 1'); A(f's_cbranch_scc1 {A.end}'); A(f's_branch {top}')

def poll(A, loads, regs, t, first_issued=False, vm=None, tok=None):
    top, ok, chk = A.label('L_poll'), A.label('L_pollok'), A.label('L_pollchk')
    if first_issued:
        vm.wait(tok); A(f's_branch {chk}')
    A(f'{top}:')
    for l in loads: A(l)
    A('s_waitcnt vmcnt(0)')
    A(f'{chk}:')
    any_sentinel(A, regs, t)
    A(f's_cbranch_vccz {ok}')
    spin_guard(A, top)
    A(f'{ok}:')

def build(W=7, kvpol='nt', stamps=False, wpol='nt', W0=3, RAMP=4, LOOK0=8, LATE=6, w2late=1, sleep=0, rot=0):
    A = Asm(); A.end = 'L_end'; A.sleep = sleep
    name = KN + '_kernel'
    kernel_open(A, name)
    names = []
    def stamp(name, spin=False):
        if not stamps: return
        if name not in names: names.append(name)
        k = names.index(name)
        if spin: A(f'v_writelane_b32 v255, s{S_SPIN}, {k}')
        else: A('s_memrealtime s[96:97]'); A('s_waitcnt lgkmcnt(0)'); A(f'v_writelane_b32 v255, s96, {k}')
    T0, T1, T2, T3, T4, T5 = S_T0, S_T1, S_T2, S_T3, S_T4, S_T5
    prologue(A, 256)
    if stamps: A('v_mov_b32 v255, 0'); A('s_mov_b32 s100, 0')
    stamp('start')
    A(f'v_mov_b32 v{R.CLR}, {WS_EPOCH}'); A(f'buffer_load_dword v{R.EP}, v{R.CLR}, {ws()}, 0 offen {SC}')
    srd(A, S_K, P_K, 0x4000000); srd(A, S_V, P_V, 0x4000000)
    def make_tag():
        A(f'v_readfirstlane_b32 s{S_TAG}, v{R.EP}'); A(f's_mul_i32 s{S_TAG}, s{S_TAG}, 0x9e3779b1'); A(f's_add_u32 s{S_TAG}, s{S_TAG}, 0x7f4a7c15')
    A(f's_mov_b32 s{S_SPIN}, 200000')
    A(f's_and_b32 s{T0}, s2, 7'); A(f's_lshr_b32 s{T1}, s2, 3')
    A(f's_bcnt1_i32_b32 s{T2}, s{T0}'); A(f's_and_b32 s{T2}, s{T2}, 1')
    A(f's_lshl_b32 s{S_PAIR}, s{T1}, 1'); A(f's_or_b32 s{S_PAIR}, s{S_PAIR}, s{T2}')
    A(f's_lshr_b32 s{S_SPLIT}, s{T0}, 1')
    A(f's_lshl_b32 s{S_KVB}, s{S_PAIR}, 20')
    A(f's_lshl_b32 s{S_STAT}, s{S_SPLIT}, 17'); A(f's_lshl_b32 s{T3}, s{S_WAVE}, 14'); A(f's_add_u32 s{S_STAT}, s{S_STAT}, s{T3}')
    A(f's_add_u32 s{S_STAT}, s{S_STAT}, s{S_KVB}')
    A(f's_and_b32 s{S_H}, s2, 31'); A(f's_lshr_b32 s{S_CG}, s2, 5')
    A(f's_add_u32 s{T0}, s{S_SPLIT}, s{T1}') if rot else A(f's_mov_b32 s{T0}, s{S_SPLIT}')
    A(f's_and_b32 s{T0}, s{T0}, 3')
    A(f's_mov_b32 s{S_RIDX}, s{S_PAIR}')
    A(f's_mov_b32 s{S_ROLE}, {ROLE_NONE}')
    A(f's_cmp_eq_u32 s{T0}, 1'); A(f's_cselect_b32 s{S_ROLE}, {ROLE_Q}, s{S_ROLE}')
    A(f's_cmp_eq_u32 s{T0}, 3'); A(f's_cselect_b32 s{S_ROLE}, {ROLE_RED}, s{S_ROLE}')
    A(f's_lshl_b32 s{T0}, s{T0}, 1'); A(f's_or_b32 s{T0}, s{T0}, s{T2}')
    if not rot:
        A(f's_and_b32 s{T4}, s{T0}, 3'); A(f's_cmp_eq_u32 s{T4}, 1'); A(f's_cselect_b32 s{T4}, s{T1}, 0'); A(f's_and_b32 s{T4}, s{T4}, 1')
        A(f's_lshl_b32 s{T4}, s{T4}, 2'); A(f's_xor_b32 s{T0}, s{T0}, s{T4}')
    A(f's_cmp_eq_u32 s{T0}, 0'); A(f's_cselect_b32 s{S_ROLE}, {ROLE_MOD}, s{S_ROLE}'); A(f's_cselect_b32 s{S_RIDX}, s{T1}, s{S_RIDX}')
    A(f's_cmp_lt_u32 s{T1}, 12'); A(f's_cselect_b32 s{T4}, {ROLE_MOD}, {ROLE_NONE}'); A(f's_add_u32 s{T5}, s{T1}, 32')
    A(f's_cmp_eq_u32 s{T0}, 4'); A(f's_cselect_b32 s{S_ROLE}, s{T4}, s{S_ROLE}'); A(f's_cselect_b32 s{S_RIDX}, s{T5}, s{S_RIDX}')
    A(f's_add_u32 s{T5}, s{T1}, 16')
    A(f's_cmp_lt_u32 s{T1}, 28'); A(f's_cselect_b32 s{T4}, {ROLE_FFN}, {ROLE_MOD}'); A(f's_cselect_b32 s{T5}, s{T1}, s{T5}')
    A(f's_cmp_eq_u32 s{T0}, 5'); A(f's_cselect_b32 s{S_ROLE}, s{T4}, s{S_ROLE}'); A(f's_cselect_b32 s{S_RIDX}, s{T5}, s{S_RIDX}')

    def q_base(d, t):
        A(f's_lshr_b32 s{d}, s{S_RIDX}, 3'); A(f's_lshl_b32 s{d}, s{d}, 10')
        A(f's_and_b32 s{t}, s{S_RIDX}, 1'); A(f's_lshl_b32 s{t}, s{t}, 9'); A(f's_add_u32 s{d}, s{d}, s{t}')
        A(f's_bfe_u32 s{t}, s{S_RIDX}, 0x20001'); A(f's_lshl_b32 s{t}, s{t}, 4'); A(f's_add_u32 s{d}, s{d}, s{t}'); A(f's_add_u32 s{d}, s{d}, {WS_Q}')
    noclr = A.label('L_noclr')
    A(f's_cmp_lg_u32 s{S_WAVE}, 0'); A(f's_cbranch_scc1 {noclr}')
    for i in range(4): A(f'v_mov_b32 v{12+i}, -1')
    A(f'v_lshlrev_b32 v16, 4, v{V_LANE}')
    A(f's_mul_i32 s{T0}, s2, {FLAT_SHARE}'); A(f's_add_u32 s{T0}, s{T0}, {WS_FLAT}'); A(f's_add_u32 s{T1}, s{T0}, 4096')
    assert FLAT_SHARE <= 7168
    for i in range(7): A(f'buffer_store_dwordx4 v[12:15], v16, {ws()}, s{T0 if i < 4 else T1} offen offset:{(i & 3)*1024} {SC}')
    nomod = A.label('L_nomod')
    A(f's_cmp_lg_u32 s{S_ROLE}, {ROLE_MOD}'); A(f's_cbranch_scc1 {nomod}')
    A(f'v_lshrrev_b32 v17, 3, v{V_LANE}'); A('v_mul_u32_u24 v17, 6144, v17'); A(f'v_and_b32 v18, 7, v{V_LANE}'); A('v_lshl_add_u32 v17, v18, 4, v17')
    A(f's_lshl_b32 s{T0}, s{S_RIDX}, 7')
    A(f'buffer_store_dwordx4 v[12:15], v17, {ws()}, s{T0} offen {SC}')
    A(f'{nomod}:')
    noq = A.label('L_noqc')
    A(f's_cmp_lg_u32 s{S_ROLE}, {ROLE_Q}'); A(f's_cbranch_scc1 {noq}')
    q_base(T0, T1)
    A(f'v_lshrrev_b32 v17, 3, v{V_LANE}'); A('v_lshlrev_b32 v17, 13, v17'); A(f'v_and_b32 v18, 7, v{V_LANE}'); A('v_lshl_add_u32 v17, v18, 6, v17')
    A(f'buffer_store_dwordx4 v[12:15], v17, {ws()}, s{T0} offen {SC}')
    A(f'{noq}:')
    A('s_mov_b64 exec, 1')
    nocnt = A.label('L_nocnt')
    A(f's_cmp_lg_u32 s{S_SPLIT}, 0'); A(f's_cbranch_scc1 {nocnt}')
    A('v_mov_b32 v17, 0'); A(f's_lshl_b32 s{T0}, s{S_PAIR}, 8'); A(f's_add_u32 s{T0}, s{T0}, {WS_CNT}')
    A(f'buffer_store_dword v17, v16, {ws()}, s{T0} offen {SC}')
    A(f'{nocnt}:')
    A(f's_lshr_b32 s{T0}, s2, 4'); A(f's_lshl_b32 s{T0}, s{T0}, 12'); A(f's_and_b32 s{T1}, s2, 15'); A(f's_lshl_b32 s{T1}, s{T1}, 2')
    A(f's_add_u32 s{T0}, s{T0}, s{T1}'); A(f's_add_u32 s{T0}, s{T0}, {WS_FLAG}')
    A('s_waitcnt vmcnt(0)')
    stamp('clr_ack')
    make_tag(); A(f'v_mov_b32 v17, s{S_TAG}')
    nomf = A.label('L_nomf')
    A(f's_cmp_lg_u32 s{S_ROLE}, {ROLE_MOD}'); A(f's_cbranch_scc1 {nomf}')
    A(f's_cmp_ge_u32 s{S_RIDX}, 16'); A(f's_cbranch_scc1 {nomf}')
    A(f's_lshl_b32 s{T1}, s{S_RIDX}, 2'); A(f's_add_u32 s{T1}, s{T1}, {WS_MFLAG}')
    A(f'buffer_store_dword v17, v16, {ws()}, s{T1} offen {SC}')
    A(f'{nomf}:')
    A(f'buffer_store_dword v17, v16, {ws()}, s{T0} offen {SC}')
    A('s_mov_b64 exec, -1')
    A(f'{noclr}:')

    attn_offsets(A, R)
    A(f's_lshl_b32 s{T0}, s{S_PAIR}, 10'); A(f's_add_u32 s{T0}, s{T0}, {WS_Q}'); A(f'v_lshl_add_u32 v{R.QADDR}, v{V_LANE}, 4, s{T0}')
    A(f'v_lshrrev_b32 v{R.DADDR}, 2, v{V_LANE}'); A(f'v_lshlrev_b32 v{R.DADDR}, 12, v{R.DADDR}'); A(f'v_and_b32 v12, 3, v{V_LANE}')
    A(f'v_lshl_add_u32 v{R.DADDR}, v12, 4, v{R.DADDR}'); A(f'v_add_u32 v{R.DADDR}, {WS_FLAG}, v{R.DADDR}')
    flag_load = f'buffer_load_dwordx4 v[{R.CLR}:{R.CLR+3}], v{R.DADDR}, {ws()}, 0 offen {SC}'
    def flags_missing():
        make_tag()
        for i in range(4): A(f'v_xor_b32 v{R.CLR+i}, s{S_TAG}, v{R.CLR+i}')
        A(f'v_or3_b32 v{R.CLR}, v{R.CLR}, v{R.CLR+1}, v{R.CLR+2}'); A(f'v_or_b32 v{R.CLR}, v{R.CLR}, v{R.CLR+3}')
        A(f'v_cmp_ne_u32 vcc, 0, v{R.CLR}')
    A(f's_lshl_b32 s{T0}, s{S_PAIR}, 8'); A(f's_add_u32 s{T0}, s{T0}, {WS_CNT}'); A(f'v_mov_b32 v{R.CADDR}, s{T0}')
    A(f's_mov_b32 s{S_HCLR}, 0'); A(f's_mov_b32 s{S_HQ}, 0')

    def kvload(vm, buf, isv, base_s, off):
        toks = []
        for i in range(4):
            A(f's_add_u32 s{T0}, s{base_s}, {off + i*1024}')
            sreg = S_V if isv else S_K
            toks.append(vm.op(f'buffer_load_dwordx4 v[{buf+4*i}:{buf+4*i+3}], v{R.VOFF if isv else R.KOFF}, s[{sreg}:{sreg+3}], s{T0} offen {kvpol}'))
        return toks
    def row_addr(v, pitch, off):
        A(f's_mul_i32 s{T0}, s{S_WAVE}, {pitch}'); A(f's_add_u32 s{T0}, s{T0}, {off}')
        A(f'v_lshl_add_u32 v{v}, v{V_LANE}, 4, s{T0}')
    def wait_cleared():
        ok, top = A.label('L_hclr'), A.label('L_wclr')
        A(f's_cmp_lg_u32 s{S_HCLR}, 0'); A(f's_cbranch_scc1 {ok}')
        A(f'{top}:'); A(flag_load); A('s_waitcnt vmcnt(0)')
        flags_missing(); A(f's_cbranch_vccz {ok}'); spin_guard(A, top); A(f'{ok}:')
        A(f's_mov_b32 s{S_HCLR}, 1')

    l_q, l_static = A.label('L_role_q'), A.label('L_static')
    A(f's_cmp_eq_u32 s{S_ROLE}, {ROLE_Q}'); A(f's_cbranch_scc1 {l_q}')
    A(f's_cmp_lg_u32 s{S_ROLE}, {ROLE_MOD}'); A(f's_cbranch_scc1 {l_static}')
    srd(A, S_W, P_WMOD, 512*6144); srd(A, S_A, P_C, 8192)
    A(f's_lshl_b32 s{T5}, s{S_RIDX}, 6')
    row_addr(144, 1024, 0); A(f'buffer_load_dwordx4 v[148:151], v144, s[{S_A}:{S_A+3}], 0 offen')
    stage64_weights(A, S_W, 6144, T5, 144, wpol)
    A('s_waitcnt vmcnt(8)'); silu8(A, 148, 152, 160)
    A('s_waitcnt vmcnt(0)'); stamp('w_landed'); stage64_wread(A, 112, 144)
    stage64_compute(A, 152, 112, 160)
    A('v_cvt_pk_bf16_f32 v168, v168, v169'); A('v_min_u32 v168, -2, v168')
    A(f's_mul_i32 s{T0}, s{S_WAVE}, 6144'); A(f's_lshl_b32 s{T1}, s{S_RIDX}, 7'); A(f's_add_u32 s{T0}, s{T0}, s{T1}')
    A(f'v_lshlrev_b32 v169, 2, v{V_LANE}')
    A(f'buffer_store_dword v168, v169, {ws()}, s{T0} offen {SC}')
    A('s_mov_b64 exec, -1')
    A(f's_branch {l_static}')
    A(f'{l_q}:')
    srd(A, S_W, P_WQ, 512*8192); srd(A, S_A, P_X, 8192)
    A(f's_lshl_b32 s{T5}, s{S_RIDX}, 6')
    row_addr(144, 1024, 0); A(f'buffer_load_dwordx4 v[148:151], v144, s[{S_A}:{S_A+3}], 0 offen')
    stage64_weights(A, S_W, 8192, T5, 144, wpol)
    top, ok = A.label('L_mf'), A.label('L_mfok')
    A(f'v_and_b32 v146, 15, v{V_LANE}'); A('v_lshlrev_b32 v146, 2, v146'); A(f'v_add_u32 v146, {WS_MFLAG}, v146')
    A(f'{top}:'); A(f'buffer_load_dword v147, v146, {ws()}, 0 offen {SC}'); A('s_waitcnt vmcnt(0)')
    make_tag(); A(f'v_cmp_ne_u32 vcc, s{S_TAG}, v147'); A(f's_cbranch_vccz {ok}'); spin_guard(A, top); A(f'{ok}:')
    stamp('w_landed')
    stage64_wread(A, 112, 144)
    row_addr(146, 6144, WS_MOD)
    poll(A, [f'buffer_load_dwordx4 v[152:155], v146, {ws()}, 0 offen offset:1024 {SC}', f'buffer_load_dwordx4 v[156:159], v146, {ws()}, 0 offen {SC}'],
         range(152, 160), 160)
    stamp('mod_seen')
    lnmod_pre(A, 152, 156, 160); lnmod(A, 148, 160, 152, 176)
    stage64_compute(A, 152, 112, 160)
    A('v_cvt_pk_bf16_f32 v168, v168, v169'); A('v_min_u32 v168, -2, v168')
    q_base(T0, T1); A(f's_lshl_b32 s{T1}, s{S_WAVE}, 13'); A(f's_add_u32 s{T0}, s{T0}, s{T1}')
    A(f'v_lshrrev_b32 v169, 2, v{V_LANE}'); A('v_lshlrev_b32 v169, 6, v169'); A(f'v_and_b32 v170, 3, v{V_LANE}'); A('v_lshl_add_u32 v169, v170, 2, v169')
    A(f'buffer_store_dword v168, v169, {ws()}, s{T0} offen {SC}')
    A('s_mov_b64 exec, -1')
    A(f'{l_static}:')
    stamp('role')

    late0 = len(A.L)
    srd(A, S_W, P_WO, 4096*1024)
    A(f'v_lshrrev_b32 v12, 3, v{V_LANE}'); A('v_lshlrev_b32 v12, 13, v12'); A(f'v_and_b32 v13, 7, v{V_LANE}'); A('v_lshl_add_u32 v12, v13, 4, v12')
    A(f's_lshl_b32 s{T0}, s{S_H}, 17'); A(f's_lshl_b32 s{T1}, s{S_CG}, 7'); A(f's_add_u32 s{T0}, s{T0}, s{T1}')
    A(f's_lshl_b32 s{T1}, s{S_WAVE}, 10'); A(f's_add_u32 s{T0}, s{T0}, s{T1}')
    A(f's_lshl_b32 s{T2}, s{S_WAVE}, 11'); A(f's_add_u32 s{T2}, s{T2}, {L_WO}')
    for i in range(2):
        A(f's_add_u32 m0, s{T2}, {i*1024}'); A(f's_add_u32 s{T1}, s{T0}, {i*64*1024}')
        A(f'buffer_load_dwordx4 v12, s[{S_W}:{S_W+3}], s{T1} offen {wpol} lds')
    l_wdone = A.label('L_dwdone')
    A(f's_cmp_lg_u32 s{S_ROLE}, {ROLE_FFN}'); A(f's_cbranch_scc1 {l_wdone}')
    srd(A, S_W, P_W1, 512*3584); A(f's_lshl_b32 s{T5}, s{S_RIDX}, 6')
    stage64_weights(A, S_W, 3584, T5, 12, wpol)
    A(f'{l_wdone}:')
    late = A.L[late0:]; del A.L[late0:]
    def w2_dma():
        srd(A, S_W, P_W2, 1792*1024)
        A(f's_lshl_b32 s{T2}, s{S_RIDX}, 6'); A(f's_lshl_b32 s{T3}, s{S_WAVE}, 7')
        A(f's_lshl_b32 s{T4}, s{S_WAVE}, 13'); A(f's_add_u32 s{T4}, s{T4}, {L_W}')
        wtile_dma(A, S_W, 1024, T2, T3, 8, T4, 12, wpol)

    vm = VM(A)
    seq = [(R.K[n], 0, 4096*n) for n in range(4)] + [(R.V[n], 1, 4096*n) for n in range(4)]
    pend, hist, tokV = [], [], {}
    def check_pending(force=False):
        if not (pend and (force or vm.is_done(pend[0]))): return
        vm.wait(pend.pop(0))
        sk, isq = A.label('L_lk'), A.label('L_lkq')
        A(f's_cmp_eq_u32 s{S_QV}, 1'); A(f's_cbranch_scc1 {isq}')
        A(f's_cmp_eq_u32 s{S_QV}, 2'); A(f's_cbranch_scc1 {sk}')
        flags_missing(); A('s_cmp_eq_u64 vcc, 0'); A(f's_cselect_b32 s{S_HCLR}, 1, 0')
        A(f's_branch {sk}')
        A(f'{isq}:')
        any_sentinel(A, range(R.Q, R.Q + 4), R.S)
        A(f's_cbranch_vccnz {sk}')
        A(f's_mov_b32 s{S_HQ}, 1')
        A(f'{sk}:')
    def look():
        sk, isq = A.label('L_li'), A.label('L_liq')
        A(f's_add_u32 s{S_QV}, s{S_HCLR}, s{S_HQ}')
        A(f's_cmp_eq_u32 s{S_QV}, 1'); A(f's_cbranch_scc1 {isq}')
        A(f's_cmp_eq_u32 s{S_QV}, 2'); A(f's_cbranch_scc1 {sk}')
        A(flag_load)
        A(f's_branch {sk}')
        A(f'{isq}:')
        A(f'buffer_load_dwordx4 v[{R.Q}:{R.Q+3}], v{R.QADDR}, {ws()}, 0 offen {SC}')
        A(f'{sk}:')
        pend.append(vm.maybe())
    for n, (buf, isv, off) in enumerate(seq):
        for i in range(4):
            j = len(hist)
            w = W0 if j < RAMP else W
            if j >= w - 1: vm.wait(hist[j - (w - 1)])
            check_pending()
            if not pend and j >= LOOK0: look()
            if j == LATE: A.L.extend(late)
            A(f's_add_u32 s{T0}, s{S_STAT}, {off + i*1024}')
            sreg = S_V if isv else S_K
            hist.append(vm.op(f'buffer_load_dwordx4 v[{buf+4*i}:{buf+4*i+3}], v{R.VOFF if isv else R.KOFF}, s[{sreg}:{sreg+3}], s{T0} offen {kvpol}'))
        if isv: tokV[n - 4] = hist[-1]
    check_pending(force=True)
    stamp('issued')
    wait_cleared()

    def claim():
        A(f'v_mov_b32 v{R.CLM}, 1'); A('s_mov_b64 exec, 1')
        t = vm.op(f'buffer_atomic_add v{R.CLM}, v{R.CADDR}, {ws()}, 0 offen sc0 {SC}')
        A('s_mov_b64 exec, -1'); return t
    TV = R.TV
    srd(A, S_A, P_X, 8192)
    row_addr(TV, 6144, WS_MOD); A(f'v_mov_b32 v{TV+1}, 0')
    l_a = A.label('L_ta')
    A('s_mov_b32 s98, 3072'); A('s_mov_b32 s99, 4096')
    A(f's_cmp_eq_u32 s{S_ROLE}, {ROLE_RED}'); A(f's_cbranch_scc0 {l_a}')
    A(f'v_and_b32 v{TV+1}, 7, v{V_LANE}'); A(f'v_mul_u32_u24 v{TV}, 6144, v{TV+1}'); A(f's_lshl_b32 s{T0}, s{S_RIDX}, 4')
    A(f'v_add_u32 v{TV}, s{T0}, v{TV}'); A(f'v_lshl_add_u32 v{TV+1}, v{TV+1}, 10, s{T0}')
    A('s_mov_b32 s98, 2048'); A('s_mov_b32 s99, 5120')
    A(f'{l_a}:')
    tl = [f'buffer_load_dwordx4 v[{TV+4}:{TV+7}], v{TV}, {ws()}, s98 offen {SC}', f'buffer_load_dwordx4 v[{TV+8}:{TV+11}], v{TV}, {ws()}, s99 offen {SC}']
    tc = claim()
    vm.op(f'buffer_load_dwordx4 v[40:43], v{TV+1}, s[{S_A}:{S_A+3}], 0 offen')
    for x in tl: tt = vm.op(x)
    have = A.label('L_haveq')
    A(f's_cmp_lg_u32 s{S_HQ}, 0'); A(f's_cbranch_scc1 {have}')
    poll(A, [f'buffer_load_dwordx4 v[{R.Q}:{R.Q+3}], v{R.QADDR}, {ws()}, 0 offen {SC}'], range(R.Q, R.Q + 4), R.S)
    A(f'{have}:')
    stamp('haveq')
    NITEM = 128
    def issue_item(kb, vb):
        A(f's_lshl_b32 s{T1}, s{S_ITEM}, 12'); A(f's_add_u32 s{T1}, s{T1}, s{S_KVB}'); A(f's_add_u32 s{T1}, s{T1}, 0x80000')
        if stamps: A('s_add_u32 s100, s100, 1'); A(f'v_writelane_b32 v255, s100, 63')
        tk = kvload(vm, kb, 0, T1, 0); c = claim(); tv = kvload(vm, vb, 1, T1, 0)
        return tk[-1], c, tv[-1]
    for n in range(2):
        vm.wait(tokV[n]); scores16(A, R.K[n]); pv16(A, R.V[n])
    vm.wait(tc)
    l_nodyn = A.label('L_nodyn')
    A(f'v_readfirstlane_b32 s{S_ITEM}, v{R.CLM}')
    A(f's_cmp_ge_u32 s{S_ITEM}, {NITEM}'); A(f's_cbranch_scc1 {l_nodyn}')
    XG = 192
    def tail_prep():
        n1, n2 = A.label('L_tp_1'), A.label('L_tp_2')
        A(f's_cmp_lg_u32 s{S_ROLE}, {ROLE_FFN}'); A(f's_cbranch_scc1 {n1}')
        stage64_wread(A, R.WROLE, 12)
        lnmod_pre(A, TV + 8, TV + 4, R.PRE)
        A('s_waitcnt lgkmcnt(0)')
        if not w2late: w2_dma()
        A(f'{n1}:')
        A(f's_cmp_lg_u32 s{S_ROLE}, {ROLE_RED}'); A(f's_cbranch_scc1 {n2}')
        ev = A.label('L_tp_e')
        A(f's_bitcmp1_b32 s{S_WAVE}, 0'); A(f's_cbranch_scc0 {ev}')
        for src in (TV + 4, TV + 8, 40): A(f'v_mov_b32 v{src}, v{src+2}'); A(f'v_mov_b32 v{src+1}, v{src+3}')
        A(f'{ev}:')
        for k, src in enumerate((TV + 4, TV + 8, 40)):
            for i in range(2): A(f'v_lshlrev_b32 v{XG+4*k+2*i}, 16, v{src+i}'); A(f'v_and_b32 v{XG+4*k+2*i+1}, s{S_HI}, v{src+i}')
        A(f'{n2}:')
        t = 12
        A(f'v_and_b32 v{t}, 3, v{V_LANE}'); A(f'v_lshrrev_b32 v{t+1}, 4, v{V_LANE}')
        A(f'v_mul_u32_u24 v{R.A_CW}, 528, v{t}'); A(f'v_lshl_add_u32 v{R.A_CW}, v{t+1}, 4, v{R.A_CW}')
        A(f's_mul_i32 s{T0}, s{S_WAVE}, {OW}'); A(f's_add_u32 s{T0}, s{T0}, {L_COMB}'); A(f'v_add_u32 v{R.A_CW}, s{T0}, v{R.A_CW}')
        A(f's_lshl_b32 s{T0}, s{S_WAVE}, 2'); A(f's_add_u32 s{T0}, s{T0}, {L_CST}'); A(f'v_lshl_add_u32 v{R.A_CS}, v{t}, 5, s{T0}')
        A(f's_lshr_b32 s{T1}, s{S_WAVE}, 1'); A(f's_and_b32 s{T2}, s{S_WAVE}, 1')
        A(f's_mul_i32 s{T0}, s{T1}, 528'); A(f's_lshl_b32 s{T3}, s{T2}, 8'); A(f's_add_u32 s{T0}, s{T0}, s{T3}'); A(f's_add_u32 s{T0}, s{T0}, {L_COMB}')
        A(f'v_lshl_add_u32 v{R.A_CR}, v{V_LANE}, 2, s{T0}')
        A(f's_lshl_b32 s{T0}, s{T1}, 5'); A(f's_add_u32 s{T0}, s{T0}, {L_CST}'); A(f'v_mov_b32 v{R.A_CM}, s{T0}')
        A(f'v_lshrrev_b32 v{R.A_OP}, 5, v{V_LANE}'); A(f'v_lshlrev_b32 v{R.A_OP}, 12, v{R.A_OP}')
        A(f'v_and_b32 v{t+2}, 31, v{V_LANE}'); A(f'v_lshl_add_u32 v{R.A_OP}, v{t+2}, 2, v{R.A_OP}')
        A(f's_and_b32 s{T0}, s{S_PAIR}, 7'); A(f's_lshl_b32 s{T0}, s{T0}, 2'); A(f's_add_u32 s{T0}, s{T0}, s{T1}')
        A(f's_lshl_b32 s4, s{T0}, 14'); A(f's_lshl_b32 s{T5}, s{T2}, 13'); A(f's_add_u32 s4, s4, s{T5}'); A(f's_lshl_b32 s{T5}, s{S_SPLIT}, 10')
        A(f's_add_u32 s4, s4, s{T5}'); A(f's_lshr_b32 s{T5}, s{S_PAIR}, 3'); A(f's_lshl_b32 s{T5}, s{T5}, 7'); A(f's_add_u32 s4, s4, s{T5}'); A(f's_add_u32 s4, s4, {WS_OP}')
        A(f's_lshl_b32 s5, s{S_PAIR}, 9'); A(f's_lshl_b32 s{T5}, s{S_SPLIT}, 7'); A(f's_add_u32 s5, s5, s{T5}'); A(f's_lshl_b32 s{T5}, s{T1}, 3')
        A(f's_add_u32 s5, s5, s{T5}'); A(f's_add_u32 s5, s5, {WS_ST}')
        A(f's_lshl_b32 s{T0}, s{S_H}, 14'); A(f's_lshl_b32 s{T1}, s{S_WAVE}, 12'); A(f's_add_u32 s{T0}, s{T0}, s{T1}'); A(f's_add_u32 s{T0}, s{T0}, {WS_OP}')
        A(f'v_lshl_add_u32 v{R.A_AG}, v{V_LANE}, 4, s{T0}')
        A(f's_lshr_b32 s{T0}, s{S_H}, 2'); A(f's_lshl_b32 s{T0}, s{T0}, 9'); A(f's_and_b32 s{T1}, s{S_H}, 3'); A(f's_lshl_b32 s{T1}, s{T1}, 3')
        A(f's_add_u32 s{T0}, s{T0}, s{T1}'); A(f's_add_u32 s{T0}, s{T0}, {WS_ST}')
        A(f'v_lshrrev_b32 v{t+3}, 3, v{V_LANE}'); A(f'v_lshlrev_b32 v{R.A_AS}, 12, v{t+3}'); A(f'v_lshl_add_u32 v{R.A_AS}, v{t}, 7, v{R.A_AS}'); A(f'v_add_u32 v{R.A_AS}, s{T0}, v{R.A_AS}')
        A(f's_mul_i32 s{T0}, s{S_WAVE}, 768'); A(f's_add_u32 s{T0}, s{T0}, {L_OX}')
        A(f'v_mul_u32_u24 v{R.A_OXW}, 96, v{t+3}'); A(f'v_and_b32 v{t+2}, 7, v{V_LANE}'); A(f'v_lshl_add_u32 v{R.A_OXW}, v{t+2}, 3, v{R.A_OXW}'); A(f'v_add_u32 v{R.A_OXW}, s{T0}, v{R.A_OXW}')
        A(f'v_mul_u32_u24 v{R.A_OXR}, 96, v{t+2}'); A(f'v_lshl_add_u32 v{R.A_OXR}, v{t+1}, 4, v{R.A_OXR}'); A(f'v_add_u32 v{R.A_OXR}, {L_OX}, v{R.A_OXR}')
        A(f'v_and_b32 v{t+2}, 15, v{V_LANE}')
        A(f'v_lshlrev_b32 v{R.A_WS}, 12, v{t+1}'); A(f'v_lshl_add_u32 v{R.A_WS}, v{t+2}, 4, v{R.A_WS}')
        A(f's_lshl_b32 s6, s{S_CG}, 16'); A(f's_lshl_b32 s{T0}, s{S_WAVE}, 14'); A(f's_add_u32 s6, s6, s{T0}'); A(f's_lshl_b32 s{T0}, s{S_H}, 7')
        A(f's_add_u32 s6, s6, s{T0}'); A(f's_add_u32 s6, s6, {WS_WOP}')
        A(f's_lshl_b32 s{T4}, s{S_WAVE}, 5'); A(f's_add_u32 s{T4}, s{T4}, {L_WO}'); tr_addr(A, R.A_WOT, t, 128, T4)
    def finish_static():
        for n in range(2, 4):
            vm.wait(tokV[n]); scores16(A, R.K[n]); pv16(A, R.V[n])
        poll(A, tl, range(TV + 4, TV + 12), R.S, first_issued=True, vm=vm, tok=tt)
        tail_prep()
    save = (vm.n, vm.done)
    issue_item(R.KA, R.VA)
    finish_static()
    loop, l_lastA, l_lastB, l_end = A.label('L_loop'), A.label('L_lastA'), A.label('L_lastB'), A.label('L_streamend')
    A(f'{loop}:')
    for (kc, vc, kn, vn, last) in ((R.KA, R.VA, R.K[0], R.V[0], l_lastA), (R.K[0], R.V[0], R.KA, R.VA, l_lastB)):
        A('s_waitcnt vmcnt(4)')
        A(f'v_readfirstlane_b32 s{S_ITEM}, v{R.CLM}')
        A(f's_cmp_ge_u32 s{S_ITEM}, {NITEM}'); A(f's_cbranch_scc1 {last}')
        issue_item(kn, vn)
        scores16(A, kc)
        A('s_waitcnt vmcnt(9)')
        pv16(A, vc)
    A(f's_branch {loop}')
    A(f'{l_nodyn}:')
    stamp('noclaim')
    vm.n, vm.done = save
    finish_static()
    A('s_waitcnt vmcnt(0)')
    A(f's_branch {l_end}')
    for (kc, vc, last) in ((R.KA, R.VA, l_lastA), (R.K[0], R.V[0], l_lastB)):
        A(f'{last}:')
        stamp('noclaim')
        scores16(A, kc); A('s_waitcnt vmcnt(0)'); pv16(A, vc)
        if last == l_lastA: A(f's_branch {l_end}')
    A(f'{l_end}:')
    stamp('streamend')

    t = R.S
    row_reduce(A, 'v_add_f32', R.L, (4, 8)); rows_reduce(A, 'v_add_f32', R.L, t)
    A('s_mov_b32 exec_lo, 0x000f000f'); A('s_mov_b32 exec_hi, 0x000f000f')
    for d in range(8): A(f'ds_write_b128 v{R.A_CW}, v[{R.O+4*d}:{R.O+4*d+3}] offset:{64*d}')
    A('s_mov_b64 exec, 15')
    A(f'ds_write_b32 v{R.A_CS}, v{R.M}'); A(f'ds_write_b32 v{R.A_CS}, v{R.L} offset:128')
    A('s_mov_b64 exec, -1')
    A('s_waitcnt lgkmcnt(0)'); A('s_barrier')
    m, l, o, M = 208, 216, 224, R.ACC
    A(f'ds_read_b128 v[{m}:{m+3}], v{R.A_CM}'); A(f'ds_read_b128 v[{m+4}:{m+7}], v{R.A_CM} offset:16')
    for w in range(8): A(f'ds_read_b32 v{o+w}, v{R.A_CR} offset:{w*OW}')
    A(f'ds_read_b128 v[{l}:{l+3}], v{R.A_CM} offset:128'); A(f'ds_read_b128 v[{l+4}:{l+7}], v{R.A_CM} offset:144')
    A('s_waitcnt lgkmcnt(10)')
    A(f'v_max3_f32 v{M}, v{m}, v{m+1}, v{m+2}'); A(f'v_max3_f32 v{M+1}, v{m+3}, v{m+4}, v{m+5}')
    A(f'v_max3_f32 v{M}, v{M}, v{m+6}, v{m+7}'); A(f'v_max_f32 v{M}, v{M}, v{M+1}')
    for w in range(8): A(f'v_sub_f32 v{m+w}, v{m+w}, v{M}')
    for w in range(8): A(f'v_mul_f32 v{m+w}, s{S_LOG2E}, v{m+w}')
    for w in range(8): A(f'v_exp_f32 v{m+w}, v{m+w}')
    A('s_waitcnt lgkmcnt(2)')
    A(f'v_mul_f32 v{M+2}, v{o}, v{m}'); A(f'v_mul_f32 v{M+3}, v{o+1}, v{m+1}')
    for w in range(2, 8, 2): A(f'v_fmac_f32 v{M+2}, v{o+w}, v{m+w}'); A(f'v_fmac_f32 v{M+3}, v{o+w+1}, v{m+w+1}')
    A(f'v_add_f32 v{M+2}, v{M+2}, v{M+3}')
    A(f'v_min_u32 v{M+2}, -2, v{M+2}')
    A(f'buffer_store_dword v{M+2}, v{R.A_OP}, {ws()}, s4 offen {SC}')
    done = A.label('L_nostat')
    A(f's_bitcmp1_b32 s{S_WAVE}, 0'); A(f's_cbranch_scc1 {done}')
    A('s_waitcnt lgkmcnt(0)')
    A(f'v_mul_f32 v{M+1}, v{l}, v{m}'); A(f'v_mul_f32 v{M+3}, v{l+1}, v{m+1}')
    for w in range(2, 8, 2): A(f'v_fmac_f32 v{M+1}, v{l+w}, v{m+w}'); A(f'v_fmac_f32 v{M+3}, v{l+w+1}, v{m+w+1}')
    A(f'v_add_f32 v{M+1}, v{M+1}, v{M+3}'); A(f'v_mov_b32 v{M+3}, 0')
    A(f'v_min_u32 v{M}, -2, v{M}'); A(f'v_min_u32 v{M+1}, -2, v{M+1}')
    A('s_mov_b64 exec, 1')
    A(f'buffer_store_dwordx2 v[{M}:{M+1}], v{M+3}, {ws()}, s5 offen {SC}')
    A('s_mov_b64 exec, -1')
    A(f'{done}:')
    stamp('partial')
    skip = A.label('L_wo_skip')
    A(f's_cmp_ge_u32 s{S_WAVE}, 4'); A(f's_cbranch_scc1 {skip}')
    for u in range(4):
        for h in range(2): A(f'ds_read_b64_tr_b16 v[{R.WWO+4*u+2*h}:{R.WWO+4*u+2*h+1}], v{R.A_WOT} offset:{(32*u+4*h)*128}')
    loads = [f'buffer_load_dwordx2 v[8:9], v{R.A_AS}, {ws()}, 0 offen {SC}']
    for sp in range(4): loads.append(f'buffer_load_dwordx4 v[{16+4*sp}:{16+4*sp+3}], v{R.A_AG}, {ws()}, 0 offen offset:{1024*sp} {SC}')
    stamp('n_a0', True)
    poll(A, loads, [8, 9] + list(range(16, 32)), 12)
    stamp('a_seen'); stamp('n_a1', True)
    dq = lambda p: f'quad_perm:{p} row_mask:0xf bank_mask:0xf'
    A(f'v_max_f32_dpp v12, v8, v8 {dq("[1,0,3,2]")}'); A(f'v_max_f32_dpp v12, v12, v12 {dq("[2,3,0,1]")}')
    A('v_sub_f32 v8, v8, v12'); A(f'v_mul_f32 v8, s{S_LOG2E}, v8'); A('v_exp_f32 v8, v8')
    A('v_mul_f32 v12, v8, v9')
    A(f'v_add_f32_dpp v12, v12, v12 {dq("[1,0,3,2]")}'); A(f'v_add_f32_dpp v12, v12, v12 {dq("[2,3,0,1]")}')
    A('v_rcp_f32 v12, v12'); A('v_mul_f32 v8, v8, v12')
    for k in range(4): A(f'v_mul_f32_dpp v{16+k}, v8, v{16+k} {dq("[0,0,0,0]")}')
    for sp in range(1, 4):
        for k in range(4): A(f'v_fmac_f32_dpp v{16+k}, v8, v{16+4*sp+k} {dq(str([sp]*4).replace(" ", ""))}')
    A('v_cvt_pk_bf16_f32 v16, v16, v17'); A('v_cvt_pk_bf16_f32 v17, v18, v19')
    A(f'ds_write_b64 v{R.A_OXW}, v[16:17]')
    A(f'{skip}:')
    A('s_waitcnt lgkmcnt(0)'); A('s_barrier')
    stamp('ogath')
    skip2 = A.label('L_wo_skip2')
    A(f's_cmp_ge_u32 s{S_WAVE}, 4'); A(f's_cbranch_scc1 {skip2}')
    for u in range(4): A(f'ds_read_b128 v[{16+4*u}:{16+4*u+3}], v{R.A_OXR} offset:{768*u}')
    for u in range(4):
        A(f's_waitcnt lgkmcnt({3-u})')
        A(f'v_mfma_f32_16x16x32_bf16 v[40:43], v[{R.WWO+4*u}:{R.WWO+4*u+3}], v[{16+4*u}:{16+4*u+3}], {"0" if u == 0 else "v[40:43]"}')
    A('s_mov_b32 exec_lo, 0x00ff00ff'); A('s_mov_b32 exec_hi, 0x00ff00ff')
    for k in range(4): A(f'v_min_u32 v{40+k}, -2, v{40+k}')
    A(f'buffer_store_dwordx4 v[40:43], v{R.A_WS}, {ws()}, s6 offen {SC}')
    A('s_mov_b64 exec, -1')
    A(f'{skip2}:')
    stamp('wopub')

    l_red, l_ffn, l_fin = A.label('L_red'), A.label('L_ffn'), A.label('L_fin')
    A(f's_cmp_eq_u32 s{S_ROLE}, {ROLE_FFN}'); A(f's_cbranch_scc1 {l_ffn}')
    A(f's_cmp_lg_u32 s{S_ROLE}, {ROLE_RED}'); A(f's_cbranch_scc1 {l_fin}')
    A(f's_and_b32 s{T0}, s{S_WAVE}, 6'); A(f's_cmp_lg_u32 s{T0}, 4'); A(f's_cbranch_scc1 {l_fin}')
    srd(A, S_A, P_OUT, 8192)
    A(f's_lshl_b32 s{T1}, s{S_RIDX}, 1'); A(f's_and_b32 s{T0}, s{S_WAVE}, 1'); A(f's_add_u32 s{T1}, s{T1}, s{T0}')
    A(f's_lshl_b32 s{T0}, s{T1}, 12'); A(f's_add_u32 s{T0}, s{T0}, {WS_WOP}'); A(f'v_lshl_add_u32 v4, v{V_LANE}, 4, s{T0}')
    A(f'v_add_u32 v6, {WS_FP - WS_WOP}, v4')
    A(f's_lshl_b32 s{T2}, s{T1}, 3'); A(f'v_and_b32 v5, 7, v{V_LANE}'); A(f'v_lshl_add_u32 v5, v5, 10, s{T2}')
    A(f's_mov_b32 s{T3}, {WS_X1}')
    def reduce_to4():
        for i in range(8): A(f'v_add_f32 v{16+i}, v{16+i}, v{24+i}')
        for i in range(4): A(f'v_add_f32 v{16+i}, v{16+i}, v{20+i}')
        for k in range(4): A(f'v_add_f32_dpp v{16+k}, v{16+k}, v{16+k} row_ror:8 row_mask:0xf bank_mask:0xf')
        for op in ('v_permlane16_swap_b32', 'v_permlane32_swap_b32'):
            for k in range(4): A(f'v_mov_b32 v{24+k}, v{16+k}')
            for k in range(4): A(f'{op} v{16+k}, v{24+k}')
            for k in range(4): A(f'v_add_f32 v{16+k}, v{16+k}, v{24+k}')
    def gate_add(gate, base):
        for step in range(3):
            if step == 1:
                for k in range(4): A(f'v_mul_f32 v{16+k}, v{16+k}, v{gate+k}')
            if step == 2:
                for k in range(4): A(f'v_add_f32 v{16+k}, v{16+k}, v{base+k}')
            A('v_cvt_pk_bf16_f32 v20, v16, v17'); A('v_cvt_pk_bf16_f32 v21, v18, v19')
            if step < 2:
                for i in range(2): A(f'v_lshlrev_b32 v{16+2*i}, 16, v{20+i}'); A(f'v_and_b32 v{17+2*i}, s{S_HI}, v{20+i}')
    poll(A, [f'buffer_load_dwordx4 v[{16+4*i}:{16+4*i+3}], v4, {ws()}, 0 offen offset:{i*1024} {SC}' for i in range(4)], range(16, 32), 12)
    stamp('b1_seen'); stamp('n_b1', True)
    reduce_to4(); gate_add(XG, XG + 8)
    A('v_min_u32 v22, -2, v20'); A('v_min_u32 v23, -2, v21')
    A('s_mov_b64 exec, 0xff')
    A(f'buffer_store_dwordx2 v[22:23], v5, {ws()}, s{T3} offen {SC}')
    A('s_mov_b64 exec, -1')
    stamp('x1pub')
    for i in range(2): A(f'v_lshlrev_b32 v{XG+8+2*i}, 16, v{20+i}'); A(f'v_and_b32 v{XG+9+2*i}, s{S_HI}, v{20+i}')
    for i in range(4): A(f'v_mov_b32 v{28+i}, 0')
    poll(A, [f'buffer_load_dwordx4 v[{16+4*i}:{16+4*i+3}], v6, {ws()}, 0 offen offset:{i*1024} {SC}' for i in range(3)] +
            ['s_mov_b32 exec_hi, 0', f'buffer_load_dwordx4 v[28:31], v6, {ws()}, 0 offen offset:3072 {SC}', 's_mov_b32 exec_hi, -1'], range(16, 32), 12)
    stamp('c_seen'); stamp('n_c', True)
    reduce_to4(); gate_add(XG + 4, XG + 8)
    A('s_mov_b64 exec, 0xff')
    A(f'buffer_store_dwordx2 v[20:21], v5, s[{S_A}:{S_A+3}], 0 offen')
    A(f's_cmp_lg_u32 s{T1}, 0'); A(f's_cbranch_scc1 {l_fin}')
    A('s_mov_b64 exec, 1'); A(f'v_mov_b32 v16, s{S_TAG}'); A(f'v_mov_b32 v17, {WS_EPOCH}')
    A(f'buffer_store_dword v16, v17, {ws()}, 0 offen {SC}')
    A(f's_branch {l_fin}')
    A(f'{l_ffn}:')
    if w2late: w2_dma()
    W2 = 208
    row_addr(4, 1024, WS_X1)
    A(f's_mul_i32 s{T0}, s{S_WAVE}, 160'); A(f's_add_u32 s{T0}, s{T0}, {L_H1}'); A(f'v_lshl_add_u32 v5, v{V_LANE}, 2, s{T0}')
    A(f'v_and_b32 v6, 7, v{V_LANE}'); A('v_mul_u32_u24 v6, 160, v6'); A(f'v_lshrrev_b32 v7, 4, v{V_LANE}'); A('v_lshl_add_u32 v6, v7, 4, v6'); A(f'v_add_u32 v6, {L_H1}, v6')
    A(f's_lshl_b32 s8, s{S_WAVE}, 16'); A(f's_lshl_b32 s{T0}, s{S_RIDX}, 7'); A(f's_add_u32 s8, s8, s{T0}'); A(f's_add_u32 s8, s8, {WS_FP}')
    for c in range(1, 4): A(f's_add_u32 s{8+c}, s8, {c*16384}')
    A('s_waitcnt vmcnt(0)')
    stamp('w2_landed')
    stage64_wread(A, W2, 12)
    poll(A, [f'buffer_load_dwordx4 v[8:11], v4, {ws()}, 0 offen {SC}'], range(8, 12), 12)
    stamp('b2_seen'); stamp('n_b2', True)
    lnmod(A, 8, R.PRE, 12, 16)
    stamp('ln2')
    stage64_compute(A, 12, R.WROLE, 40)
    A('v_max_f32 v48, 0, v48'); A('v_max_f32 v49, 0, v49'); A('v_cvt_pk_bf16_f32 v48, v48, v49')
    A('ds_write_b32 v5, v48')
    A('s_mov_b64 exec, -1')
    A('s_waitcnt lgkmcnt(0)'); A('s_barrier')
    stamp('h1')
    A('ds_read_b128 v[16:19], v6'); A('ds_read_b128 v[20:23], v6 offset:64')
    A('s_waitcnt lgkmcnt(1)')
    for c in range(4): A(f'v_mfma_f32_16x16x32_bf16 v[{24+4*c}:{24+4*c+3}], v[{W2+4*c}:{W2+4*c+3}], v[16:19], 0')
    A('s_waitcnt lgkmcnt(0)')
    for c in range(4): A(f'v_mfma_f32_16x16x32_bf16 v[{24+4*c}:{24+4*c+3}], v[{W2+16+4*c}:{W2+16+4*c+3}], v[20:23], v[{24+4*c}:{24+4*c+3}]')
    A('s_mov_b32 exec_lo, 0x00ff00ff'); A('s_mov_b32 exec_hi, 0x00ff00ff')
    for c in range(4):
        for k in range(4): A(f'v_min_u32 v{24+4*c+k}, -2, v{24+4*c+k}')
        A(f'buffer_store_dwordx4 v[{24+4*c}:{24+4*c+3}], v{R.A_WS}, {ws()}, s{8+c} offen {SC}')
    A('s_mov_b64 exec, -1')
    A(f'{l_fin}:')
    A('s_mov_b64 exec, -1')
    stamp('fin')
    if stamps:
        A(f's_lshl_b32 s{T0}, s2, 3'); A(f's_add_u32 s{T0}, s{T0}, s{S_WAVE}'); A(f's_lshl_b32 s{T0}, s{T0}, 8'); A(f's_add_u32 s{T0}, s{T0}, {WS_STAMP}')
        A(f'v_lshlrev_b32 v4, 2, v{V_LANE}')
        A(f'buffer_store_dword v255, v4, {ws()}, s{T0} offen')
    A('L_end:'); A('s_endpgm')
    body, n = A.text()
    head = open('cdna_kernels/' + KN + '.s.ref').read().split('; Override launch')[0]
    head += f'; @launch grid=(256,1,1) block=(512,1,1) lds={LDS_BYTES}\n.amdgcn_target "amdgcn-amd-amdhsa--gfx950"\n.text\n'
    if stamps: head = '; stamps: ' + ' '.join(names) + '\n' + head
    return head + body + '.section .rodata,"a"\n' + descriptor(name)

if __name__ == '__main__':
    out = sys.argv[1]; kw = {}
    for a in sys.argv[2:]:
        k, v = a.split('=')
        kw[k] = int(v) if v.lstrip('-').isdigit() else v.replace('+', ' ')
    open(out, 'w').write(build(**kw))
```

```python
import sys; sys.path.insert(0, 'gen')
from blocks import *

WS_MOD  = 0x000000
WS_Q    = 0x010000
WS_FLAT = 0x020000
WS_OP   = 0x020000
WS_WOP  = 0x0A0000
WS_FP   = 0x120000
WS_ST   = 0x1A0000
WS_X1   = 0x1A8000
FLAT_SHARE = (0x1AA000 - WS_FLAT) // 256
WS_EPOCH = 0x1C0000
WS_FLAG  = 0x1C1000
WS_MFLAG = 0x1D8000
WS_CNT   = 0x1B0000
WS_STAMP = 0x200000
S_TAG = 80
S_PAIR, S_SPLIT, S_ROLE, S_RIDX, S_KVB, S_STAT, S_HCLR, S_HQ, S_QV, S_SPIN, S_ITEM = 84, 85, 86, 87, 88, 89, 90, 91, 92, 93, 94
S_H, S_CG = 42, 43
S_P0 = 4
ROLE_NONE, ROLE_MOD, ROLE_Q, ROLE_FFN, ROLE_RED = 0, 1, 2, 3, 4
SC = 'sc1'

L_WO   = LDS64_BYTES
L_COMB = L_WO + 0x4000
OW = 2048 + 64
L_CST  = L_COMB + 8 * OW
L_OX   = L_CST + 256
L_H1   = L_OX + 4 * 768
LDS_BYTES = L_H1 + 8 * 160

class R:
    Q = 4; M = 8; L = 9; KOFF = 10; VOFF = 11; S = 12; B = 20; CLM = 22; CADDR = 23
    ACC = 24; D0 = 28; VT = 32; QT = 40; CLR = 28; QADDR = 45; DADDR = 46; EP = 47
    O = 48; D = 208
    K = [80, 96, 112, 128]; V = [144, 160, 176, 192]; KA = 208; VA = 224
    WWO = 96; WROLE = 112; PRE = 160; TV = 240
    A_CW = 176; A_CS = 177; A_CR = 178; A_CM = 179; A_OP = 180; A_AG = 181; A_AS = 182; A_OXW = 183; A_OXR = 184; A_WS = 185; A_WOT = 186

class VM:
    def __init__(self, A): self.A = A; self.n = 0; self.done = 0
    def op(self, text): self.A(text); self.n += 1; return self.n
    def wait(self, tok):
        if tok <= self.done: return
        k = self.n - int(tok)
        assert k <= 63
        self.A(f's_waitcnt vmcnt({k})'); self.done = tok
    def maybe(self):
        return self.n + 0.5
    def is_done(self, tok): return tok <= self.done
    def drained(self): self.done = self.n

def ws(): return f's[{S_WS}:{S_WS+3}]'

def scores16(A, kb):
    D = [R.D0, kb, kb + 4, kb + 8]
    for t in range(4):
        A(f'v_mfma_f32_16x16x32_bf16 v[{D[t]}:{D[t]+3}], v[{kb+4*t}:{kb+4*t+3}], v[{R.Q}:{R.Q+3}], 0')
    for t in range(4):
        for p in range(4):
            n = 4 * ((t - p) % 4)
            ctl = f'row_ror:{n}' if n else 'quad_perm:[0,1,2,3]'
            A(f'v_mov_b32_dpp v{R.ACC+p}, v{D[t]+p} {ctl} row_mask:0xf bank_mask:{1<<t:#x}')
    a, s, t = R.ACC, R.S, R.S + 1
    A(f'v_add_f32 v{a}, v{a}, v{a+1}'); A(f'v_add_f32 v{a+2}, v{a+2}, v{a+3}'); A(f'v_add_f32 v{s}, v{a}, v{a+2}')
    round1(A, s); A(f'v_mul_f32 v{s}, s{S_SCALE}, v{s}'); round1(A, s)
    skip = A.label('L_nomax')
    A(f'v_cmp_gt_f32 vcc, v{s}, v{R.M}')
    A(f's_cbranch_vccz {skip}')
    A(f'v_max_f32_dpp v{t}, v{s}, v{s} row_ror:4 row_mask:0xf bank_mask:0xf')
    row_reduce(A, 'v_max_f32', t, (8,)); rows_reduce(A, 'v_max_f32', t, t + 1)
    A(f'v_max_f32 v{t}, v{t}, v{R.M}')
    A(f'v_sub_f32 v{t+1}, v{R.M}, v{t}'); A(f'v_mov_b32 v{R.M}, v{t}')
    A(f'v_mul_f32 v{t+1}, s{S_LOG2E}, v{t+1}'); A(f'v_exp_f32 v{t+1}, v{t+1}')
    A(f'v_mul_f32 v{R.L}, v{R.L}, v{t+1}')
    for i in range(32): A(f'v_mul_f32 v{R.O+i}, v{R.O+i}, v{t+1}')
    A(f'{skip}:')
    A(f'v_sub_f32 v{s}, v{s}, v{R.M}'); A(f'v_mul_f32 v{s}, s{S_LOG2E}, v{s}'); A(f'v_exp_f32 v{s}, v{s}')
    A(f'v_mov_b32_dpp v{t}, v{s} row_ror:12 row_mask:0xf bank_mask:0xf')
    A(f'v_add_f32 v{R.L}, v{R.L}, v{s}')
    A(f'v_cvt_pk_bf16_f32 v{R.B}, v{s}, v{t}')
    A(f'v_mov_b32_dpp v{R.B+1}, v{R.B} row_ror:8 row_mask:0xf bank_mask:0xf')

def pv16(A, vb):
    for d in range(8):
        vt = R.VT + 2 * (d % 4)
        sel = S_SELHI if d & 1 else S_SELLO
        A(f'v_perm_b32 v{vt}, v{vb+4+(d>>1)}, v{vb+(d>>1)}, s{sel}')
        A(f'v_perm_b32 v{vt+1}, v{vb+12+(d>>1)}, v{vb+8+(d>>1)}, s{sel}')
        if d >= 1:
            e = d - 1; ve = R.VT + 2 * (e % 4)
            A(f'v_mfma_f32_16x16x16_bf16 v[{R.O+4*e}:{R.O+4*e+3}], v[{ve}:{ve+1}], v[{R.B}:{R.B+1}], v[{R.O+4*e}:{R.O+4*e+3}]')
    ve = R.VT + 2 * 3
    A(f'v_mfma_f32_16x16x16_bf16 v[{R.O+28}:{R.O+31}], v[{ve}:{ve+1}], v[{R.B}:{R.B+1}], v[{R.O+28}:{R.O+31}]')

def any_sentinel(A, regs, t):
    regs = list(regs)
    cur = None
    if len(regs) == 1: A(f'v_cmp_eq_u32 vcc, -1, v{regs[0]}'); return
    outs = []
    i = 0
    acc = [t, t + 1]
    first = [True, True]
    k = 0
    while i < len(regs):
        a = acc[k & 1]
        if first[k & 1]:
            if i + 2 < len(regs): A(f'v_max3_u32 v{a}, v{regs[i]}, v{regs[i+1]}, v{regs[i+2]}'); i += 3
            elif i + 1 < len(regs): A(f'v_max_u32 v{a}, v{regs[i]}, v{regs[i+1]}'); i += 2
            else: A(f'v_mov_b32 v{a}, v{regs[i]}'); i += 1
            first[k & 1] = False
        else:
            if i + 1 < len(regs): A(f'v_max3_u32 v{a}, v{a}, v{regs[i]}, v{regs[i+1]}'); i += 2
            else: A(f'v_max_u32 v{a}, v{a}, v{regs[i]}'); i += 1
        k += 1
    if not first[1]: A(f'v_max_u32 v{t}, v{t}, v{t+1}')
    A(f'v_cmp_eq_u32 vcc, -1, v{t}')

def spin_guard(A, top):
    if getattr(A, 'sleep', 0): A(f's_sleep {A.sleep}')
    A(f's_sub_u32 s{S_SPIN}, s{S_SPIN}, 1'); A(f's_cbranch_scc1 {A.end}'); A(f's_branch {top}')

def poll(A, loads, regs, t, first_issued=False, vm=None, tok=None):
    top, ok, chk = A.label('L_poll'), A.label('L_pollok'), A.label('L_pollchk')
    if first_issued:
        vm.wait(tok); A(f's_branch {chk}')
    A(f'{top}:')
    for l in loads: A(l)
    A('s_waitcnt vmcnt(0)')
    A(f'{chk}:')
    any_sentinel(A, regs, t)
    A(f's_cbranch_vccz {ok}')
    spin_guard(A, top)
    A(f'{ok}:')

def build(W=7, kvpol='nt', stamps=False, wpol='nt', W0=3, RAMP=4, LOOK0=8, LATE=6, w2late=1, sleep=0, rot=0):
    A = Asm(); A.end = 'L_end'; A.sleep = sleep
    name = KN + '_kernel'
    kernel_open(A, name)
    names = []
    def stamp(name, spin=False):
        if not stamps: return
        if stamps == 2 and (spin or name not in ('start', 'clr_ack', 'mod_seen', 'role', 'issued', 'haveq', 'streamend', 'partial', 'a_seen', 'wopub', 'b1_seen', 'b2_seen', 'c_seen', 'fin')): return
        if name not in names: names.append(name)
        k = names.index(name)
        if spin: A(f'v_writelane_b32 v255, s{S_SPIN}, {k}')
        else: A('s_memrealtime s[96:97]'); A('s_waitcnt lgkmcnt(0)'); A(f'v_writelane_b32 v255, s96, {k}')
    T0, T1, T2, T3, T4, T5 = S_T0, S_T1, S_T2, S_T3, S_T4, S_T5
    prologue(A, 256)
    if stamps: A('v_mov_b32 v255, 0'); A('s_mov_b32 s100, 0')
    stamp('start')
    A(f'v_mov_b32 v{R.CLR}, {WS_EPOCH}'); A(f'buffer_load_dword v{R.EP}, v{R.CLR}, {ws()}, 0 offen {SC}')
    srd(A, S_K, P_K, 0x4000000); srd(A, S_V, P_V, 0x4000000)
    def make_tag():
        A(f'v_readfirstlane_b32 s{S_TAG}, v{R.EP}'); A(f's_mul_i32 s{S_TAG}, s{S_TAG}, 0x9e3779b1'); A(f's_add_u32 s{S_TAG}, s{S_TAG}, 0x7f4a7c15')
    A(f's_mov_b32 s{S_SPIN}, 200000')
    A(f's_and_b32 s{T0}, s2, 7'); A(f's_lshr_b32 s{T1}, s2, 3')
    A(f's_bcnt1_i32_b32 s{T2}, s{T0}'); A(f's_and_b32 s{T2}, s{T2}, 1')
    A(f's_lshl_b32 s{S_PAIR}, s{T1}, 1'); A(f's_or_b32 s{S_PAIR}, s{S_PAIR}, s{T2}')
    A(f's_lshr_b32 s{S_SPLIT}, s{T0}, 1')
    A(f's_lshl_b32 s{S_KVB}, s{S_PAIR}, 20')
    A(f's_lshl_b32 s{S_STAT}, s{S_SPLIT}, 17'); A(f's_lshl_b32 s{T3}, s{S_WAVE}, 14'); A(f's_add_u32 s{S_STAT}, s{S_STAT}, s{T3}')
    A(f's_add_u32 s{S_STAT}, s{S_STAT}, s{S_KVB}')
    A(f's_and_b32 s{S_H}, s2, 31'); A(f's_lshr_b32 s{S_CG}, s2, 5')
    A(f's_add_u32 s{T0}, s{S_SPLIT}, s{T1}') if rot else A(f's_mov_b32 s{T0}, s{S_SPLIT}')
    A(f's_and_b32 s{T0}, s{T0}, 3')
    A(f's_mov_b32 s{S_RIDX}, s{S_PAIR}')
    A(f's_mov_b32 s{S_ROLE}, {ROLE_NONE}')
    A(f's_cmp_eq_u32 s{T0}, 1'); A(f's_cselect_b32 s{S_ROLE}, {ROLE_Q}, s{S_ROLE}')
    A(f's_cmp_eq_u32 s{T0}, 3'); A(f's_cselect_b32 s{S_ROLE}, {ROLE_RED}, s{S_ROLE}')
    A(f's_lshl_b32 s{T0}, s{T0}, 1'); A(f's_or_b32 s{T0}, s{T0}, s{T2}')
    if not rot:
        A(f's_and_b32 s{T4}, s{T0}, 3'); A(f's_cmp_eq_u32 s{T4}, 1'); A(f's_cselect_b32 s{T4}, s{T1}, 0'); A(f's_and_b32 s{T4}, s{T4}, 1')
        A(f's_lshl_b32 s{T4}, s{T4}, 2'); A(f's_xor_b32 s{T0}, s{T0}, s{T4}')
    A(f's_cmp_eq_u32 s{T0}, 0'); A(f's_cselect_b32 s{S_ROLE}, {ROLE_MOD}, s{S_ROLE}'); A(f's_cselect_b32 s{S_RIDX}, s{T1}, s{S_RIDX}')
    A(f's_cmp_lt_u32 s{T1}, 12'); A(f's_cselect_b32 s{T4}, {ROLE_MOD}, {ROLE_NONE}'); A(f's_add_u32 s{T5}, s{T1}, 32')
    A(f's_cmp_eq_u32 s{T0}, 4'); A(f's_cselect_b32 s{S_ROLE}, s{T4}, s{S_ROLE}'); A(f's_cselect_b32 s{S_RIDX}, s{T5}, s{S_RIDX}')
    A(f's_add_u32 s{T5}, s{T1}, 16')
    A(f's_cmp_lt_u32 s{T1}, 28'); A(f's_cselect_b32 s{T4}, {ROLE_FFN}, {ROLE_MOD}'); A(f's_cselect_b32 s{T5}, s{T1}, s{T5}')
    A(f's_cmp_eq_u32 s{T0}, 5'); A(f's_cselect_b32 s{S_ROLE}, s{T4}, s{S_ROLE}'); A(f's_cselect_b32 s{S_RIDX}, s{T5}, s{S_RIDX}')

    def q_base(d, t):
        A(f's_lshr_b32 s{d}, s{S_RIDX}, 3'); A(f's_lshl_b32 s{d}, s{d}, 10')
        A(f's_and_b32 s{t}, s{S_RIDX}, 1'); A(f's_lshl_b32 s{t}, s{t}, 9'); A(f's_add_u32 s{d}, s{d}, s{t}')
        A(f's_bfe_u32 s{t}, s{S_RIDX}, 0x20001'); A(f's_lshl_b32 s{t}, s{t}, 4'); A(f's_add_u32 s{d}, s{d}, s{t}'); A(f's_add_u32 s{d}, s{d}, {WS_Q}')
    noclr = A.label('L_noclr')
    A(f's_cmp_lg_u32 s{S_WAVE}, 0'); A(f's_cbranch_scc1 {noclr}')
    for i in range(4): A(f'v_mov_b32 v{12+i}, -1')
    A(f'v_lshlrev_b32 v16, 4, v{V_LANE}')
    A(f's_mul_i32 s{T0}, s2, {FLAT_SHARE}'); A(f's_add_u32 s{T0}, s{T0}, {WS_FLAT}'); A(f's_add_u32 s{T1}, s{T0}, 4096')
    assert FLAT_SHARE <= 7168
    for i in range(7): A(f'buffer_store_dwordx4 v[12:15], v16, {ws()}, s{T0 if i < 4 else T1} offen offset:{(i & 3)*1024} {SC}')
    nomod = A.label('L_nomod')
    A(f's_cmp_lg_u32 s{S_ROLE}, {ROLE_MOD}'); A(f's_cbranch_scc1 {nomod}')
    A(f'v_lshrrev_b32 v17, 3, v{V_LANE}'); A('v_mul_u32_u24 v17, 6144, v17'); A(f'v_and_b32 v18, 7, v{V_LANE}'); A('v_lshl_add_u32 v17, v18, 4, v17')
    A(f's_lshl_b32 s{T0}, s{S_RIDX}, 7')
    A(f'buffer_store_dwordx4 v[12:15], v17, {ws()}, s{T0} offen {SC}')
    A(f'{nomod}:')
    noq = A.label('L_noqc')
    A(f's_cmp_lg_u32 s{S_ROLE}, {ROLE_Q}'); A(f's_cbranch_scc1 {noq}')
    q_base(T0, T1)
    A(f'v_lshrrev_b32 v17, 3, v{V_LANE}'); A('v_lshlrev_b32 v17, 13, v17'); A(f'v_and_b32 v18, 7, v{V_LANE}'); A('v_lshl_add_u32 v17, v18, 6, v17')
    A(f'buffer_store_dwordx4 v[12:15], v17, {ws()}, s{T0} offen {SC}')
    A(f'{noq}:')
    A('s_mov_b64 exec, 1')
    nocnt = A.label('L_nocnt')
    A(f's_cmp_lg_u32 s{S_SPLIT}, 0'); A(f's_cbranch_scc1 {nocnt}')
    A('v_mov_b32 v17, 0'); A(f's_lshl_b32 s{T0}, s{S_PAIR}, 8'); A(f's_add_u32 s{T0}, s{T0}, {WS_CNT}')
    A(f'buffer_store_dword v17, v16, {ws()}, s{T0} offen {SC}')
    A(f'{nocnt}:')
    A(f's_lshr_b32 s{T0}, s2, 4'); A(f's_lshl_b32 s{T0}, s{T0}, 12'); A(f's_and_b32 s{T1}, s2, 15'); A(f's_lshl_b32 s{T1}, s{T1}, 2')
    A(f's_add_u32 s{T0}, s{T0}, s{T1}'); A(f's_add_u32 s{T0}, s{T0}, {WS_FLAG}')
    A('s_waitcnt vmcnt(0)')
    stamp('clr_ack')
    make_tag(); A(f'v_mov_b32 v17, s{S_TAG}')
    nomf = A.label('L_nomf')
    A(f's_cmp_lg_u32 s{S_ROLE}, {ROLE_MOD}'); A(f's_cbranch_scc1 {nomf}')
    A(f's_cmp_ge_u32 s{S_RIDX}, 16'); A(f's_cbranch_scc1 {nomf}')
    A(f's_lshl_b32 s{T1}, s{S_RIDX}, 2'); A(f's_add_u32 s{T1}, s{T1}, {WS_MFLAG}')
    A(f'buffer_store_dword v17, v16, {ws()}, s{T1} offen {SC}')
    A(f'{nomf}:')
    A(f'buffer_store_dword v17, v16, {ws()}, s{T0} offen {SC}')
    A('s_mov_b64 exec, -1')
    A(f'{noclr}:')

    attn_offsets(A, R)
    A(f's_lshl_b32 s{T0}, s{S_PAIR}, 10'); A(f's_add_u32 s{T0}, s{T0}, {WS_Q}'); A(f'v_lshl_add_u32 v{R.QADDR}, v{V_LANE}, 4, s{T0}')
    A(f'v_lshrrev_b32 v{R.DADDR}, 2, v{V_LANE}'); A(f'v_lshlrev_b32 v{R.DADDR}, 12, v{R.DADDR}'); A(f'v_and_b32 v12, 3, v{V_LANE}')
    A(f'v_lshl_add_u32 v{R.DADDR}, v12, 4, v{R.DADDR}'); A(f'v_add_u32 v{R.DADDR}, {WS_FLAG}, v{R.DADDR}')
    flag_load = f'buffer_load_dwordx4 v[{R.CLR}:{R.CLR+3}], v{R.DADDR}, {ws()}, 0 offen {SC}'
    def flags_missing():
        make_tag()
        for i in range(4): A(f'v_xor_b32 v{R.CLR+i}, s{S_TAG}, v{R.CLR+i}')
        A(f'v_or3_b32 v{R.CLR}, v{R.CLR}, v{R.CLR+1}, v{R.CLR+2}'); A(f'v_or_b32 v{R.CLR}, v{R.CLR}, v{R.CLR+3}')
        A(f'v_cmp_ne_u32 vcc, 0, v{R.CLR}')
    A(f's_lshl_b32 s{T0}, s{S_PAIR}, 8'); A(f's_add_u32 s{T0}, s{T0}, {WS_CNT}'); A(f'v_mov_b32 v{R.CADDR}, s{T0}')
    A(f's_mov_b32 s{S_HCLR}, 0'); A(f's_mov_b32 s{S_HQ}, 0')

    def kvload(vm, buf, isv, base_s, off):
        toks = []
        for i in range(4):
            A(f's_add_u32 s{T0}, s{base_s}, {off + i*1024}')
            sreg = S_V if isv else S_K
            toks.append(vm.op(f'buffer_load_dwordx4 v[{buf+4*i}:{buf+4*i+3}], v{R.VOFF if isv else R.KOFF}, s[{sreg}:{sreg+3}], s{T0} offen {kvpol}'))
        return toks
    def row_addr(v, pitch, off):
        A(f's_mul_i32 s{T0}, s{S_WAVE}, {pitch}'); A(f's_add_u32 s{T0}, s{T0}, {off}')
        A(f'v_lshl_add_u32 v{v}, v{V_LANE}, 4, s{T0}')
    def wait_cleared():
        ok, top = A.label('L_hclr'), A.label('L_wclr')
        A(f's_cmp_lg_u32 s{S_HCLR}, 0'); A(f's_cbranch_scc1 {ok}')
        A(f'{top}:'); A(flag_load); A('s_waitcnt vmcnt(0)')
        flags_missing(); A(f's_cbranch_vccz {ok}'); spin_guard(A, top); A(f'{ok}:')
        A(f's_mov_b32 s{S_HCLR}, 1')

    l_q, l_static = A.label('L_role_q'), A.label('L_static')
    A(f's_cmp_eq_u32 s{S_ROLE}, {ROLE_Q}'); A(f's_cbranch_scc1 {l_q}')
    A(f's_cmp_lg_u32 s{S_ROLE}, {ROLE_MOD}'); A(f's_cbranch_scc1 {l_static}')
    srd(A, S_W, P_WMOD, 512*6144); srd(A, S_A, P_C, 8192)
    A(f's_lshl_b32 s{T5}, s{S_RIDX}, 6')
    row_addr(144, 1024, 0); A(f'buffer_load_dwordx4 v[148:151], v144, s[{S_A}:{S_A+3}], 0 offen')
    stage64_weights(A, S_W, 6144, T5, 144, wpol)
    A('s_waitcnt vmcnt(8)'); silu8(A, 148, 152, 160)
    A('s_waitcnt vmcnt(0)'); stamp('w_landed'); stage64_wread(A, 112, 144)
    stage64_compute(A, 152, 112, 160)
    A('v_cvt_pk_bf16_f32 v168, v168, v169'); A('v_min_u32 v168, -2, v168')
    A(f's_mul_i32 s{T0}, s{S_WAVE}, 6144'); A(f's_lshl_b32 s{T1}, s{S_RIDX}, 7'); A(f's_add_u32 s{T0}, s{T0}, s{T1}')
    A(f'v_lshlrev_b32 v169, 2, v{V_LANE}')
    A(f'buffer_store_dword v168, v169, {ws()}, s{T0} offen {SC}')
    A('s_mov_b64 exec, -1')
    A(f's_branch {l_static}')
    A(f'{l_q}:')
    srd(A, S_W, P_WQ, 512*8192); srd(A, S_A, P_X, 8192)
    A(f's_lshl_b32 s{T5}, s{S_RIDX}, 6')
    row_addr(144, 1024, 0); A(f'buffer_load_dwordx4 v[148:151], v144, s[{S_A}:{S_A+3}], 0 offen')
    stage64_weights(A, S_W, 8192, T5, 144, wpol)
    top, ok = A.label('L_mf'), A.label('L_mfok')
    A(f'v_and_b32 v146, 15, v{V_LANE}'); A('v_lshlrev_b32 v146, 2, v146'); A(f'v_add_u32 v146, {WS_MFLAG}, v146')
    A(f'{top}:'); A(f'buffer_load_dword v147, v146, {ws()}, 0 offen {SC}'); A('s_waitcnt vmcnt(0)')
    make_tag(); A(f'v_cmp_ne_u32 vcc, s{S_TAG}, v147'); A(f's_cbranch_vccz {ok}'); spin_guard(A, top); A(f'{ok}:')
    stamp('w_landed')
    stage64_wread(A, 112, 144)
    row_addr(146, 6144, WS_MOD)
    poll(A, [f'buffer_load_dwordx4 v[152:155], v146, {ws()}, 0 offen offset:1024 {SC}', f'buffer_load_dwordx4 v[156:159], v146, {ws()}, 0 offen {SC}'],
         range(152, 160), 160)
    stamp('mod_seen')
    lnmod_pre(A, 152, 156, 160); lnmod(A, 148, 160, 152, 176)
    stage64_compute(A, 152, 112, 160)
    A('v_cvt_pk_bf16_f32 v168, v168, v169'); A('v_min_u32 v168, -2, v168')
    q_base(T0, T1); A(f's_lshl_b32 s{T1}, s{S_WAVE}, 13'); A(f's_add_u32 s{T0}, s{T0}, s{T1}')
    A(f'v_lshrrev_b32 v169, 2, v{V_LANE}'); A('v_lshlrev_b32 v169, 6, v169'); A(f'v_and_b32 v170, 3, v{V_LANE}'); A('v_lshl_add_u32 v169, v170, 2, v169')
    A(f'buffer_store_dword v168, v169, {ws()}, s{T0} offen {SC}')
    A('s_mov_b64 exec, -1')
    A(f'{l_static}:')
    stamp('role')

    late0 = len(A.L)
    srd(A, S_W, P_WO, 4096*1024)
    A(f'v_lshrrev_b32 v12, 3, v{V_LANE}'); A('v_lshlrev_b32 v12, 13, v12'); A(f'v_and_b32 v13, 7, v{V_LANE}'); A('v_lshl_add_u32 v12, v13, 4, v12')
    A(f's_lshl_b32 s{T0}, s{S_H}, 17'); A(f's_lshl_b32 s{T1}, s{S_CG}, 7'); A(f's_add_u32 s{T0}, s{T0}, s{T1}')
    A(f's_lshl_b32 s{T1}, s{S_WAVE}, 10'); A(f's_add_u32 s{T0}, s{T0}, s{T1}')
    A(f's_lshl_b32 s{T2}, s{S_WAVE}, 11'); A(f's_add_u32 s{T2}, s{T2}, {L_WO}')
    for i in range(2):
        A(f's_add_u32 m0, s{T2}, {i*1024}'); A(f's_add_u32 s{T1}, s{T0}, {i*64*1024}')
        A(f'buffer_load_dwordx4 v12, s[{S_W}:{S_W+3}], s{T1} offen {wpol} lds')
    l_wdone = A.label('L_dwdone')
    A(f's_cmp_lg_u32 s{S_ROLE}, {ROLE_FFN}'); A(f's_cbranch_scc1 {l_wdone}')
    srd(A, S_W, P_W1, 512*3584); A(f's_lshl_b32 s{T5}, s{S_RIDX}, 6')
    stage64_weights(A, S_W, 3584, T5, 12, wpol)
    A(f'{l_wdone}:')
    late = A.L[late0:]; del A.L[late0:]
    def w2_dma():
        srd(A, S_W, P_W2, 1792*1024)
        A(f's_lshl_b32 s{T2}, s{S_RIDX}, 6'); A(f's_lshl_b32 s{T3}, s{S_WAVE}, 7')
        A(f's_lshl_b32 s{T4}, s{S_WAVE}, 13'); A(f's_add_u32 s{T4}, s{T4}, {L_W}')
        wtile_dma(A, S_W, 1024, T2, T3, 8, T4, 12, wpol)

    vm = VM(A)
    seq = [(R.K[n], 0, 4096*n) for n in range(4)] + [(R.V[n], 1, 4096*n) for n in range(4)]
    pend, hist, tokV = [], [], {}
    def check_pending(force=False):
        if not (pend and (force or vm.is_done(pend[0]))): return
        vm.wait(pend.pop(0))
        sk, isq = A.label('L_lk'), A.label('L_lkq')
        A(f's_cmp_eq_u32 s{S_QV}, 1'); A(f's_cbranch_scc1 {isq}')
        A(f's_cmp_eq_u32 s{S_QV}, 2'); A(f's_cbranch_scc1 {sk}')
        flags_missing(); A('s_cmp_eq_u64 vcc, 0'); A(f's_cselect_b32 s{S_HCLR}, 1, 0')
        A(f's_branch {sk}')
        A(f'{isq}:')
        any_sentinel(A, range(R.Q, R.Q + 4), R.S)
        A(f's_cbranch_vccnz {sk}')
        A(f's_mov_b32 s{S_HQ}, 1')
        A(f'{sk}:')
    def look():
        sk, isq = A.label('L_li'), A.label('L_liq')
        A(f's_add_u32 s{S_QV}, s{S_HCLR}, s{S_HQ}')
        A(f's_cmp_eq_u32 s{S_QV}, 1'); A(f's_cbranch_scc1 {isq}')
        A(f's_cmp_eq_u32 s{S_QV}, 2'); A(f's_cbranch_scc1 {sk}')
        A(flag_load)
        A(f's_branch {sk}')
        A(f'{isq}:')
        A(f'buffer_load_dwordx4 v[{R.Q}:{R.Q+3}], v{R.QADDR}, {ws()}, 0 offen {SC}')
        A(f'{sk}:')
        pend.append(vm.maybe())
    for n, (buf, isv, off) in enumerate(seq):
        for i in range(4):
            j = len(hist)
            w = W0 if j < RAMP else W
            if j >= w - 1: vm.wait(hist[j - (w - 1)])
            check_pending()
            if not pend and j >= LOOK0: look()
            if j == LATE: A.L.extend(late)
            A(f's_add_u32 s{T0}, s{S_STAT}, {off + i*1024}')
            sreg = S_V if isv else S_K
            hist.append(vm.op(f'buffer_load_dwordx4 v[{buf+4*i}:{buf+4*i+3}], v{R.VOFF if isv else R.KOFF}, s[{sreg}:{sreg+3}], s{T0} offen {kvpol}'))
        if isv: tokV[n - 4] = hist[-1]
    check_pending(force=True)
    stamp('issued')
    wait_cleared()

    def claim():
        A(f'v_mov_b32 v{R.CLM}, 1'); A('s_mov_b64 exec, 1')
        t = vm.op(f'buffer_atomic_add v{R.CLM}, v{R.CADDR}, {ws()}, 0 offen sc0 {SC}')
        A('s_mov_b64 exec, -1'); return t
    TV = R.TV
    srd(A, S_A, P_X, 8192)
    row_addr(TV, 6144, WS_MOD); A(f'v_mov_b32 v{TV+1}, 0')
    l_a = A.label('L_ta')
    A('s_mov_b32 s98, 3072'); A('s_mov_b32 s99, 4096')
    A(f's_cmp_eq_u32 s{S_ROLE}, {ROLE_RED}'); A(f's_cbranch_scc0 {l_a}')
    A(f'v_and_b32 v{TV+1}, 7, v{V_LANE}'); A(f'v_mul_u32_u24 v{TV}, 6144, v{TV+1}'); A(f's_lshl_b32 s{T0}, s{S_RIDX}, 4')
    A(f'v_add_u32 v{TV}, s{T0}, v{TV}'); A(f'v_lshl_add_u32 v{TV+1}, v{TV+1}, 10, s{T0}')
    A('s_mov_b32 s98, 2048'); A('s_mov_b32 s99, 5120')
    A(f'{l_a}:')
    tl = [f'buffer_load_dwordx4 v[{TV+4}:{TV+7}], v{TV}, {ws()}, s98 offen {SC}', f'buffer_load_dwordx4 v[{TV+8}:{TV+11}], v{TV}, {ws()}, s99 offen {SC}']
    tc = claim()
    vm.op(f'buffer_load_dwordx4 v[40:43], v{TV+1}, s[{S_A}:{S_A+3}], 0 offen')
    for x in tl: tt = vm.op(x)
    have = A.label('L_haveq')
    A(f's_cmp_lg_u32 s{S_HQ}, 0'); A(f's_cbranch_scc1 {have}')
    poll(A, [f'buffer_load_dwordx4 v[{R.Q}:{R.Q+3}], v{R.QADDR}, {ws()}, 0 offen {SC}'], range(R.Q, R.Q + 4), R.S)
    A(f'{have}:')
    stamp('haveq')
    NITEM = 128
    def issue_item(kb, vb):
        A(f's_lshl_b32 s{T1}, s{S_ITEM}, 12'); A(f's_add_u32 s{T1}, s{T1}, s{S_KVB}'); A(f's_add_u32 s{T1}, s{T1}, 0x80000')
        if stamps: A('s_add_u32 s100, s100, 1'); A(f'v_writelane_b32 v255, s100, 63')
        tk = kvload(vm, kb, 0, T1, 0); c = claim(); tv = kvload(vm, vb, 1, T1, 0)
        return tk[-1], c, tv[-1]
    for n in range(2):
        vm.wait(tokV[n]); scores16(A, R.K[n]); pv16(A, R.V[n])
    vm.wait(tc)
    l_nodyn = A.label('L_nodyn')
    A(f'v_readfirstlane_b32 s{S_ITEM}, v{R.CLM}')
    A(f's_cmp_ge_u32 s{S_ITEM}, {NITEM}'); A(f's_cbranch_scc1 {l_nodyn}')
    XG = 192
    def tail_prep():
        n1, n2 = A.label('L_tp_1'), A.label('L_tp_2')
        A(f's_cmp_lg_u32 s{S_ROLE}, {ROLE_FFN}'); A(f's_cbranch_scc1 {n1}')
        stage64_wread(A, R.WROLE, 12)
        lnmod_pre(A, TV + 8, TV + 4, R.PRE)
        A('s_waitcnt lgkmcnt(0)')
        if not w2late: w2_dma()
        A(f'{n1}:')
        A(f's_cmp_lg_u32 s{S_ROLE}, {ROLE_RED}'); A(f's_cbranch_scc1 {n2}')
        ev = A.label('L_tp_e')
        A(f's_bitcmp1_b32 s{S_WAVE}, 0'); A(f's_cbranch_scc0 {ev}')
        for src in (TV + 4, TV + 8, 40): A(f'v_mov_b32 v{src}, v{src+2}'); A(f'v_mov_b32 v{src+1}, v{src+3}')
        A(f'{ev}:')
        for k, src in enumerate((TV + 4, TV + 8, 40)):
            for i in range(2): A(f'v_lshlrev_b32 v{XG+4*k+2*i}, 16, v{src+i}'); A(f'v_and_b32 v{XG+4*k+2*i+1}, s{S_HI}, v{src+i}')
        A(f'{n2}:')
        t = 12
        A(f'v_and_b32 v{t}, 3, v{V_LANE}'); A(f'v_lshrrev_b32 v{t+1}, 4, v{V_LANE}')
        A(f'v_mul_u32_u24 v{R.A_CW}, 528, v{t}'); A(f'v_lshl_add_u32 v{R.A_CW}, v{t+1}, 4, v{R.A_CW}')
        A(f's_mul_i32 s{T0}, s{S_WAVE}, {OW}'); A(f's_add_u32 s{T0}, s{T0}, {L_COMB}'); A(f'v_add_u32 v{R.A_CW}, s{T0}, v{R.A_CW}')
        A(f's_lshl_b32 s{T0}, s{S_WAVE}, 2'); A(f's_add_u32 s{T0}, s{T0}, {L_CST}'); A(f'v_lshl_add_u32 v{R.A_CS}, v{t}, 5, s{T0}')
        A(f's_lshr_b32 s{T1}, s{S_WAVE}, 1'); A(f's_and_b32 s{T2}, s{S_WAVE}, 1')
        A(f's_mul_i32 s{T0}, s{T1}, 528'); A(f's_lshl_b32 s{T3}, s{T2}, 8'); A(f's_add_u32 s{T0}, s{T0}, s{T3}'); A(f's_add_u32 s{T0}, s{T0}, {L_COMB}')
        A(f'v_lshl_add_u32 v{R.A_CR}, v{V_LANE}, 2, s{T0}')
        A(f's_lshl_b32 s{T0}, s{T1}, 5'); A(f's_add_u32 s{T0}, s{T0}, {L_CST}'); A(f'v_mov_b32 v{R.A_CM}, s{T0}')
        A(f'v_lshrrev_b32 v{R.A_OP}, 5, v{V_LANE}'); A(f'v_lshlrev_b32 v{R.A_OP}, 12, v{R.A_OP}')
        A(f'v_and_b32 v{t+2}, 31, v{V_LANE}'); A(f'v_lshl_add_u32 v{R.A_OP}, v{t+2}, 2, v{R.A_OP}')
        A(f's_and_b32 s{T0}, s{S_PAIR}, 7'); A(f's_lshl_b32 s{T0}, s{T0}, 2'); A(f's_add_u32 s{T0}, s{T0}, s{T1}')
        A(f's_lshl_b32 s4, s{T0}, 14'); A(f's_lshl_b32 s{T5}, s{T2}, 13'); A(f's_add_u32 s4, s4, s{T5}'); A(f's_lshl_b32 s{T5}, s{S_SPLIT}, 10')
        A(f's_add_u32 s4, s4, s{T5}'); A(f's_lshr_b32 s{T5}, s{S_PAIR}, 3'); A(f's_lshl_b32 s{T5}, s{T5}, 7'); A(f's_add_u32 s4, s4, s{T5}'); A(f's_add_u32 s4, s4, {WS_OP}')
        A(f's_lshl_b32 s5, s{S_PAIR}, 9'); A(f's_lshl_b32 s{T5}, s{S_SPLIT}, 7'); A(f's_add_u32 s5, s5, s{T5}'); A(f's_lshl_b32 s{T5}, s{T1}, 3')
        A(f's_add_u32 s5, s5, s{T5}'); A(f's_add_u32 s5, s5, {WS_ST}')
        A(f's_lshl_b32 s{T0}, s{S_H}, 14'); A(f's_lshl_b32 s{T1}, s{S_WAVE}, 12'); A(f's_add_u32 s{T0}, s{T0}, s{T1}'); A(f's_add_u32 s{T0}, s{T0}, {WS_OP}')
        A(f'v_lshl_add_u32 v{R.A_AG}, v{V_LANE}, 4, s{T0}')
        A(f's_lshr_b32 s{T0}, s{S_H}, 2'); A(f's_lshl_b32 s{T0}, s{T0}, 9'); A(f's_and_b32 s{T1}, s{S_H}, 3'); A(f's_lshl_b32 s{T1}, s{T1}, 3')
        A(f's_add_u32 s{T0}, s{T0}, s{T1}'); A(f's_add_u32 s{T0}, s{T0}, {WS_ST}')
        A(f'v_lshrrev_b32 v{t+3}, 3, v{V_LANE}'); A(f'v_lshlrev_b32 v{R.A_AS}, 12, v{t+3}'); A(f'v_lshl_add_u32 v{R.A_AS}, v{t}, 7, v{R.A_AS}'); A(f'v_add_u32 v{R.A_AS}, s{T0}, v{R.A_AS}')
        A(f's_mul_i32 s{T0}, s{S_WAVE}, 768'); A(f's_add_u32 s{T0}, s{T0}, {L_OX}')
        A(f'v_mul_u32_u24 v{R.A_OXW}, 96, v{t+3}'); A(f'v_and_b32 v{t+2}, 7, v{V_LANE}'); A(f'v_lshl_add_u32 v{R.A_OXW}, v{t+2}, 3, v{R.A_OXW}'); A(f'v_add_u32 v{R.A_OXW}, s{T0}, v{R.A_OXW}')
        A(f'v_mul_u32_u24 v{R.A_OXR}, 96, v{t+2}'); A(f'v_lshl_add_u32 v{R.A_OXR}, v{t+1}, 4, v{R.A_OXR}'); A(f'v_add_u32 v{R.A_OXR}, {L_OX}, v{R.A_OXR}')
        A(f'v_and_b32 v{t+2}, 15, v{V_LANE}')
        A(f'v_lshlrev_b32 v{R.A_WS}, 12, v{t+1}'); A(f'v_lshl_add_u32 v{R.A_WS}, v{t+2}, 4, v{R.A_WS}')
        A(f's_lshl_b32 s6, s{S_CG}, 16'); A(f's_lshl_b32 s{T0}, s{S_WAVE}, 14'); A(f's_add_u32 s6, s6, s{T0}'); A(f's_lshl_b32 s{T0}, s{S_H}, 7')
        A(f's_add_u32 s6, s6, s{T0}'); A(f's_add_u32 s6, s6, {WS_WOP}')
        A(f's_lshl_b32 s{T4}, s{S_WAVE}, 5'); A(f's_add_u32 s{T4}, s{T4}, {L_WO}'); tr_addr(A, R.A_WOT, t, 128, T4)
    def finish_static():
        for n in range(2, 4):
            vm.wait(tokV[n]); scores16(A, R.K[n]); pv16(A, R.V[n])
        poll(A, tl, range(TV + 4, TV + 12), R.S, first_issued=True, vm=vm, tok=tt)
        tail_prep()
    save = (vm.n, vm.done)
    issue_item(R.KA, R.VA)
    finish_static()
    loop, l_lastA, l_lastB, l_end = A.label('L_loop'), A.label('L_lastA'), A.label('L_lastB'), A.label('L_streamend')
    A(f'{loop}:')
    for (kc, vc, kn, vn, last) in ((R.KA, R.VA, R.K[0], R.V[0], l_lastA), (R.K[0], R.V[0], R.KA, R.VA, l_lastB)):
        A('s_waitcnt vmcnt(4)')
        A(f'v_readfirstlane_b32 s{S_ITEM}, v{R.CLM}')
        A(f's_cmp_ge_u32 s{S_ITEM}, {NITEM}'); A(f's_cbranch_scc1 {last}')
        issue_item(kn, vn)
        scores16(A, kc)
        A('s_waitcnt vmcnt(9)')
        pv16(A, vc)
    A(f's_branch {loop}')
    A(f'{l_nodyn}:')
    stamp('noclaim')
    vm.n, vm.done = save
    finish_static()
    A('s_waitcnt vmcnt(0)')
    A(f's_branch {l_end}')
    for (kc, vc, last) in ((R.KA, R.VA, l_lastA), (R.K[0], R.V[0], l_lastB)):
        A(f'{last}:')
        stamp('noclaim')
        scores16(A, kc); A('s_waitcnt vmcnt(0)'); pv16(A, vc)
        if last == l_lastA: A(f's_branch {l_end}')
    A(f'{l_end}:')
    stamp('streamend')

    t = R.S
    row_reduce(A, 'v_add_f32', R.L, (4, 8)); rows_reduce(A, 'v_add_f32', R.L, t)
    A('s_mov_b32 exec_lo, 0x000f000f'); A('s_mov_b32 exec_hi, 0x000f000f')
    for d in range(8): A(f'ds_write_b128 v{R.A_CW}, v[{R.O+4*d}:{R.O+4*d+3}] offset:{64*d}')
    A('s_mov_b64 exec, 15')
    A(f'ds_write_b32 v{R.A_CS}, v{R.M}'); A(f'ds_write_b32 v{R.A_CS}, v{R.L} offset:128')
    A('s_mov_b64 exec, -1')
    A('s_waitcnt lgkmcnt(0)'); A('s_barrier')
    m, l, o, M = 208, 216, 224, R.ACC
    A(f'ds_read_b128 v[{m}:{m+3}], v{R.A_CM}'); A(f'ds_read_b128 v[{m+4}:{m+7}], v{R.A_CM} offset:16')
    for w in range(8): A(f'ds_read_b32 v{o+w}, v{R.A_CR} offset:{w*OW}')
    A(f'ds_read_b128 v[{l}:{l+3}], v{R.A_CM} offset:128'); A(f'ds_read_b128 v[{l+4}:{l+7}], v{R.A_CM} offset:144')
    A('s_waitcnt lgkmcnt(10)')
    A(f'v_max3_f32 v{M}, v{m}, v{m+1}, v{m+2}'); A(f'v_max3_f32 v{M+1}, v{m+3}, v{m+4}, v{m+5}')
    A(f'v_max3_f32 v{M}, v{M}, v{m+6}, v{m+7}'); A(f'v_max_f32 v{M}, v{M}, v{M+1}')
    for w in range(8): A(f'v_sub_f32 v{m+w}, v{m+w}, v{M}')
    for w in range(8): A(f'v_mul_f32 v{m+w}, s{S_LOG2E}, v{m+w}')
    for w in range(8): A(f'v_exp_f32 v{m+w}, v{m+w}')
    A('s_waitcnt lgkmcnt(2)')
    A(f'v_mul_f32 v{M+2}, v{o}, v{m}'); A(f'v_mul_f32 v{M+3}, v{o+1}, v{m+1}')
    for w in range(2, 8, 2): A(f'v_fmac_f32 v{M+2}, v{o+w}, v{m+w}'); A(f'v_fmac_f32 v{M+3}, v{o+w+1}, v{m+w+1}')
    A(f'v_add_f32 v{M+2}, v{M+2}, v{M+3}')
    A(f'v_min_u32 v{M+2}, -2, v{M+2}')
    A(f'buffer_store_dword v{M+2}, v{R.A_OP}, {ws()}, s4 offen {SC}')
    done = A.label('L_nostat')
    A(f's_bitcmp1_b32 s{S_WAVE}, 0'); A(f's_cbranch_scc1 {done}')
    A('s_waitcnt lgkmcnt(0)')
    A(f'v_mul_f32 v{M+1}, v{l}, v{m}'); A(f'v_mul_f32 v{M+3}, v{l+1}, v{m+1}')
    for w in range(2, 8, 2): A(f'v_fmac_f32 v{M+1}, v{l+w}, v{m+w}'); A(f'v_fmac_f32 v{M+3}, v{l+w+1}, v{m+w+1}')
    A(f'v_add_f32 v{M+1}, v{M+1}, v{M+3}'); A(f'v_mov_b32 v{M+3}, 0')
    A(f'v_min_u32 v{M}, -2, v{M}'); A(f'v_min_u32 v{M+1}, -2, v{M+1}')
    A('s_mov_b64 exec, 1')
    A(f'buffer_store_dwordx2 v[{M}:{M+1}], v{M+3}, {ws()}, s5 offen {SC}')
    A('s_mov_b64 exec, -1')
    A(f'{done}:')
    stamp('partial')
    skip = A.label('L_wo_skip')
    A(f's_cmp_ge_u32 s{S_WAVE}, 4'); A(f's_cbranch_scc1 {skip}')
    for u in range(4):
        for h in range(2): A(f'ds_read_b64_tr_b16 v[{R.WWO+4*u+2*h}:{R.WWO+4*u+2*h+1}], v{R.A_WOT} offset:{(32*u+4*h)*128}')
    loads = [f'buffer_load_dwordx2 v[8:9], v{R.A_AS}, {ws()}, 0 offen {SC}']
    for sp in range(4): loads.append(f'buffer_load_dwordx4 v[{16+4*sp}:{16+4*sp+3}], v{R.A_AG}, {ws()}, 0 offen offset:{1024*sp} {SC}')
    stamp('n_a0', True)
    poll(A, loads, [8, 9] + list(range(16, 32)), 12)
    stamp('a_seen'); stamp('n_a1', True)
    dq = lambda p: f'quad_perm:{p} row_mask:0xf bank_mask:0xf'
    A(f'v_max_f32_dpp v12, v8, v8 {dq("[1,0,3,2]")}'); A(f'v_max_f32_dpp v12, v12, v12 {dq("[2,3,0,1]")}')
    A('v_sub_f32 v8, v8, v12'); A(f'v_mul_f32 v8, s{S_LOG2E}, v8'); A('v_exp_f32 v8, v8')
    A('v_mul_f32 v12, v8, v9')
    A(f'v_add_f32_dpp v12, v12, v12 {dq("[1,0,3,2]")}'); A(f'v_add_f32_dpp v12, v12, v12 {dq("[2,3,0,1]")}')
    A('v_rcp_f32 v12, v12'); A('v_mul_f32 v8, v8, v12')
    for k in range(4): A(f'v_mul_f32_dpp v{16+k}, v8, v{16+k} {dq("[0,0,0,0]")}')
    for sp in range(1, 4):
        for k in range(4): A(f'v_fmac_f32_dpp v{16+k}, v8, v{16+4*sp+k} {dq(str([sp]*4).replace(" ", ""))}')
    A('v_cvt_pk_bf16_f32 v16, v16, v17'); A('v_cvt_pk_bf16_f32 v17, v18, v19')
    A(f'ds_write_b64 v{R.A_OXW}, v[16:17]')
    A(f'{skip}:')
    A('s_waitcnt lgkmcnt(0)'); A('s_barrier')
    stamp('ogath')
    skip2 = A.label('L_wo_skip2')
    A(f's_cmp_ge_u32 s{S_WAVE}, 4'); A(f's_cbranch_scc1 {skip2}')
    for u in range(4): A(f'ds_read_b128 v[{16+4*u}:{16+4*u+3}], v{R.A_OXR} offset:{768*u}')
    for u in range(4):
        A(f's_waitcnt lgkmcnt({3-u})')
        A(f'v_mfma_f32_16x16x32_bf16 v[40:43], v[{R.WWO+4*u}:{R.WWO+4*u+3}], v[{16+4*u}:{16+4*u+3}], {"0" if u == 0 else "v[40:43]"}')
    A('s_mov_b32 exec_lo, 0x00ff00ff'); A('s_mov_b32 exec_hi, 0x00ff00ff')
    for k in range(4): A(f'v_min_u32 v{40+k}, -2, v{40+k}')
    A(f'buffer_store_dwordx4 v[40:43], v{R.A_WS}, {ws()}, s6 offen {SC}')
    A('s_mov_b64 exec, -1')
    A(f'{skip2}:')
    stamp('wopub')

    l_red, l_ffn, l_fin = A.label('L_red'), A.label('L_ffn'), A.label('L_fin')
    A(f's_cmp_eq_u32 s{S_ROLE}, {ROLE_FFN}'); A(f's_cbranch_scc1 {l_ffn}')
    A(f's_cmp_lg_u32 s{S_ROLE}, {ROLE_RED}'); A(f's_cbranch_scc1 {l_fin}')
    A(f's_and_b32 s{T0}, s{S_WAVE}, 6'); A(f's_cmp_lg_u32 s{T0}, 4'); A(f's_cbranch_scc1 {l_fin}')
    srd(A, S_A, P_OUT, 8192)
    A(f's_lshl_b32 s{T1}, s{S_RIDX}, 1'); A(f's_and_b32 s{T0}, s{S_WAVE}, 1'); A(f's_add_u32 s{T1}, s{T1}, s{T0}')
    A(f's_lshl_b32 s{T0}, s{T1}, 12'); A(f's_add_u32 s{T0}, s{T0}, {WS_WOP}'); A(f'v_lshl_add_u32 v4, v{V_LANE}, 4, s{T0}')
    A(f'v_add_u32 v6, {WS_FP - WS_WOP}, v4')
    A(f's_lshl_b32 s{T2}, s{T1}, 3'); A(f'v_and_b32 v5, 7, v{V_LANE}'); A(f'v_lshl_add_u32 v5, v5, 10, s{T2}')
    A(f's_mov_b32 s{T3}, {WS_X1}')
    def reduce_to4():
        for i in range(8): A(f'v_add_f32 v{16+i}, v{16+i}, v{24+i}')
        for i in range(4): A(f'v_add_f32 v{16+i}, v{16+i}, v{20+i}')
        for k in range(4): A(f'v_add_f32_dpp v{16+k}, v{16+k}, v{16+k} row_ror:8 row_mask:0xf bank_mask:0xf')
        for op in ('v_permlane16_swap_b32', 'v_permlane32_swap_b32'):
            for k in range(4): A(f'v_mov_b32 v{24+k}, v{16+k}')
            for k in range(4): A(f'{op} v{16+k}, v{24+k}')
            for k in range(4): A(f'v_add_f32 v{16+k}, v{16+k}, v{24+k}')
    def gate_add(gate, base):
        for step in range(3):
            if step == 1:
                for k in range(4): A(f'v_mul_f32 v{16+k}, v{16+k}, v{gate+k}')
            if step == 2:
                for k in range(4): A(f'v_add_f32 v{16+k}, v{16+k}, v{base+k}')
            A('v_cvt_pk_bf16_f32 v20, v16, v17'); A('v_cvt_pk_bf16_f32 v21, v18, v19')
            if step < 2:
                for i in range(2): A(f'v_lshlrev_b32 v{16+2*i}, 16, v{20+i}'); A(f'v_and_b32 v{17+2*i}, s{S_HI}, v{20+i}')
    poll(A, [f'buffer_load_dwordx4 v[{16+4*i}:{16+4*i+3}], v4, {ws()}, 0 offen offset:{i*1024} {SC}' for i in range(4)], range(16, 32), 12)
    stamp('b1_seen'); stamp('n_b1', True)
    reduce_to4(); gate_add(XG, XG + 8)
    A('v_min_u32 v22, -2, v20'); A('v_min_u32 v23, -2, v21')
    A('s_mov_b64 exec, 0xff')
    A(f'buffer_store_dwordx2 v[22:23], v5, {ws()}, s{T3} offen {SC}')
    A('s_mov_b64 exec, -1')
    stamp('x1pub')
    for i in range(2): A(f'v_lshlrev_b32 v{XG+8+2*i}, 16, v{20+i}'); A(f'v_and_b32 v{XG+9+2*i}, s{S_HI}, v{20+i}')
    for i in range(4): A(f'v_mov_b32 v{28+i}, 0')
    poll(A, [f'buffer_load_dwordx4 v[{16+4*i}:{16+4*i+3}], v6, {ws()}, 0 offen offset:{i*1024} {SC}' for i in range(3)] +
            ['s_mov_b32 exec_hi, 0', f'buffer_load_dwordx4 v[28:31], v6, {ws()}, 0 offen offset:3072 {SC}', 's_mov_b32 exec_hi, -1'], range(16, 32), 12)
    stamp('c_seen'); stamp('n_c', True)
    reduce_to4(); gate_add(XG + 4, XG + 8)
    A('s_mov_b64 exec, 0xff')
    A(f'buffer_store_dwordx2 v[20:21], v5, s[{S_A}:{S_A+3}], 0 offen')
    A(f's_cmp_lg_u32 s{T1}, 0'); A(f's_cbranch_scc1 {l_fin}')
    A('s_mov_b64 exec, 1'); A(f'v_mov_b32 v16, s{S_TAG}'); A(f'v_mov_b32 v17, {WS_EPOCH}')
    A(f'buffer_store_dword v16, v17, {ws()}, 0 offen {SC}')
    A(f's_branch {l_fin}')
    A(f'{l_ffn}:')
    if w2late: w2_dma()
    W2 = 208
    row_addr(4, 1024, WS_X1)
    A(f's_mul_i32 s{T0}, s{S_WAVE}, 160'); A(f's_add_u32 s{T0}, s{T0}, {L_H1}'); A(f'v_lshl_add_u32 v5, v{V_LANE}, 2, s{T0}')
    A(f'v_and_b32 v6, 7, v{V_LANE}'); A('v_mul_u32_u24 v6, 160, v6'); A(f'v_lshrrev_b32 v7, 4, v{V_LANE}'); A('v_lshl_add_u32 v6, v7, 4, v6'); A(f'v_add_u32 v6, {L_H1}, v6')
    A(f's_lshl_b32 s8, s{S_WAVE}, 16'); A(f's_lshl_b32 s{T0}, s{S_RIDX}, 7'); A(f's_add_u32 s8, s8, s{T0}'); A(f's_add_u32 s8, s8, {WS_FP}')
    for c in range(1, 4): A(f's_add_u32 s{8+c}, s8, {c*16384}')
    A('s_waitcnt vmcnt(0)')
    stamp('w2_landed')
    stage64_wread(A, W2, 12)
    poll(A, [f'buffer_load_dwordx4 v[8:11], v4, {ws()}, 0 offen {SC}'], range(8, 12), 12)
    stamp('b2_seen'); stamp('n_b2', True)
    lnmod(A, 8, R.PRE, 12, 16)
    stamp('ln2')
    stage64_compute(A, 12, R.WROLE, 40)
    A('v_max_f32 v48, 0, v48'); A('v_max_f32 v49, 0, v49'); A('v_cvt_pk_bf16_f32 v48, v48, v49')
    A('ds_write_b32 v5, v48')
    A('s_mov_b64 exec, -1')
    A('s_waitcnt lgkmcnt(0)'); A('s_barrier')
    stamp('h1')
    A('ds_read_b128 v[16:19], v6'); A('ds_read_b128 v[20:23], v6 offset:64')
    A('s_waitcnt lgkmcnt(1)')
    for c in range(4): A(f'v_mfma_f32_16x16x32_bf16 v[{24+4*c}:{24+4*c+3}], v[{W2+4*c}:{W2+4*c+3}], v[16:19], 0')
    A('s_waitcnt lgkmcnt(0)')
    for c in range(4): A(f'v_mfma_f32_16x16x32_bf16 v[{24+4*c}:{24+4*c+3}], v[{W2+16+4*c}:{W2+16+4*c+3}], v[20:23], v[{24+4*c}:{24+4*c+3}]')
    A('s_mov_b32 exec_lo, 0x00ff00ff'); A('s_mov_b32 exec_hi, 0x00ff00ff')
    for c in range(4):
        for k in range(4): A(f'v_min_u32 v{24+4*c+k}, -2, v{24+4*c+k}')
        A(f'buffer_store_dwordx4 v[{24+4*c}:{24+4*c+3}], v{R.A_WS}, {ws()}, s{8+c} offen {SC}')
    A('s_mov_b64 exec, -1')
    A(f'{l_fin}:')
    A('s_mov_b64 exec, -1')
    stamp('fin')
    if stamps:
        A(f's_lshl_b32 s{T0}, s2, 3'); A(f's_add_u32 s{T0}, s{T0}, s{S_WAVE}'); A(f's_lshl_b32 s{T0}, s{T0}, 8'); A(f's_add_u32 s{T0}, s{T0}, {WS_STAMP}')
        A(f'v_lshlrev_b32 v4, 2, v{V_LANE}')
        A(f'buffer_store_dword v255, v4, {ws()}, s{T0} offen')
        if stamps == 2:
            srd(A, S_A, P_DBG, 256)
            A('v_not_b32 v5, v255'); A(f'v_cmp_eq_u32 vcc, 0, v{V_LANE}'); A('v_cndmask_b32 v5, v255, v5, vcc')
            A(f'buffer_atomic_umax v5, v4, s[{S_A}:{S_A+3}], 0 offen sc1')
    A('L_end:'); A('s_endpgm')
    body, n = A.text()
    head = open('cdna_kernels/' + KN + '.s.ref').read().split('; Override launch')[0]
    head += f'; @launch grid=(256,1,1) block=(512,1,1) lds={LDS_BYTES}\n.amdgcn_target "amdgcn-amd-amdhsa--gfx950"\n.text\n'
    if stamps: head = '; stamps: ' + ' '.join(names) + '\n' + head
    return head + body + '.section .rodata,"a"\n' + descriptor(name)

if __name__ == '__main__':
    out = sys.argv[1]; kw = {}
    for a in sys.argv[2:]:
        k, v = a.split('=')
        kw[k] = int(v) if v.lstrip('-').isdigit() else v.replace('+', ' ')
    open(out, 'w').write(build(**kw))
```
